```python
import torch

def _softmax(x, axis=-1):
    return torch.softmax(x, dim=axis)

def _gelu(x):
    return torch.nn.functional.gelu(x, approximate='tanh')

def _silu(x):
    return torch.nn.functional.silu(x)

def _sigmoid(x):
    return torch.sigmoid(x)

def _layernorm(x, axis=-1, eps=1e-05):
    m = x.mean(dim=axis, keepdim=True)
    v = x.var(dim=axis, keepdim=True, unbiased=False)
    return (x - m) / torch.sqrt(v + eps)

def _scatter_add(tgt, idx, src, axis=0):
    return tgt.clone().index_add_(axis, idx, src)

def _segment_sum(src, seg, n):
    out = torch.zeros((n,) + src.shape[1:], dtype=src.dtype)
    return out.index_add_(0, seg, src)

def _pad(x, pw):
    flat = tuple((v for pair in reversed(pw) for v in pair))
    return torch.nn.functional.pad(x, flat)
kernel_name = 'adaLN_cond__ssm_conv_s4d__geglu_ffn__prompt'

def setup_inputs():

    _w = lambda a: (lambda t: t.to(torch.bfloat16) if t.is_floating_point() else t)(torch.as_tensor(a))

    def _A_setup():
        Bsz, L, D, N = (1, 2048, 512, 128)
        return {'u': _w((lambda *s: torch.randn(*s, dtype=torch.bfloat16) * 0.05)(Bsz, L, D)), 'log_A_real': _w((lambda *s: torch.randn(*s, dtype=torch.bfloat16) * 3.2)(D, N) * 0.5), 'A_imag': _w((lambda *s: torch.randn(*s, dtype=torch.bfloat16) * 0.05)(D, N) * 3.14), 'C_real': _w((lambda *s: torch.randn(*s, dtype=torch.bfloat16) * 0.4)(D, N) / N ** 0.5), 'C_imag': _w((lambda *s: torch.randn(*s, dtype=torch.bfloat16) * 0.4)(D, N) / N ** 0.5), 'log_dt': _w((lambda *s: torch.randn(*s, dtype=torch.bfloat16) * 0.05)(D) * 0.5 - 4.0), 'D_skip': _w((lambda *s: torch.randn(*s, dtype=torch.bfloat16) * 0.1)(D))}
    _A_in = _A_setup()

    def _B_setup():
        B, S, D, F = (1, 2048, 512, 1376)
        return {'x': _w((lambda *s: torch.randn(*s, dtype=torch.bfloat16) * 0.05)(B, S, D)), 'w_gate': _w((lambda *s: torch.randn(*s, dtype=torch.bfloat16) * 0.05)(D, F)), 'w_up': _w((lambda *s: torch.randn(*s, dtype=torch.bfloat16) * 0.05)(D, F)), 'w_down': _w((lambda *s: torch.randn(*s, dtype=torch.bfloat16) * 0.05)(F, D))}
    _B_in = _B_setup()
    return {'A_u': _A_in['u'], 'A_log_A_real': _A_in['log_A_real'], 'A_A_imag': _A_in['A_imag'], 'A_C_real': _A_in['C_real'], 'A_C_imag': _A_in['C_imag'], 'A_log_dt': _A_in['log_dt'], 'A_D_skip': _A_in['D_skip'], 'B_x': _B_in['x'], 'B_w_gate': _B_in['w_gate'], 'B_w_up': _B_in['w_up'], 'B_w_down': _B_in['w_down'], 'c': _w((lambda *s: torch.randn(*s, dtype=torch.bfloat16) * 0.2)(1, 512) * 8.0), 'w_mod': _w((lambda *s: torch.randn(*s, dtype=torch.bfloat16) * 0.2)(512, 6 * 512) * 512 ** (-0.5) * 8.0)}

def reference(A_u, A_log_A_real, A_A_imag, A_C_real, A_C_imag, A_log_dt, A_D_skip, B_x, B_w_gate, B_w_up, B_w_down, c, w_mod):

    def _A_ref(u, log_A_real, A_imag, C_real, C_imag, log_dt, D_skip):
        L = u.shape[1]
        dt = torch.exp(log_dt)
        A = -torch.exp(log_A_real) + 1j * A_imag
        C = (C_real + 1j * C_imag) * dt[:, None]
        pos = (lambda x, dt: x.to(dt))(torch.arange(L), log_dt.dtype)
        P = torch.exp((A * dt[:, None])[:, :, None] * pos[None, None, :])
        K = 2.0 * torch.einsum('dn,dnl->dl', C, P).real
        L2 = 2 * L
        u_t = (lambda x, *d: x.permute(*d))(u, 0, 2, 1)
        Kf = (lambda x, *a, **k: torch.fft.rfft(x.float(), *a, **k))(K, L2)
        Uf = (lambda x, *a, **k: torch.fft.rfft(x.float(), *a, **k))(u_t, L2)
        y = (lambda x, *a, **k: torch.fft.irfft(x, *a, **k).to(torch.bfloat16))(Uf * Kf[None, :, :], L2)[:, :, :L]
        y = (lambda x, *d: x.permute(*d))(y, 0, 2, 1)
        return y + u * D_skip[None, None, :]

    def _B_ref(x, w_gate, w_up, w_down):
        return _gelu(x @ w_gate) * (x @ w_up) @ w_down
    x = A_u
    mod = (_silu(c) @ w_mod).reshape(c.shape[0], 6, 1, -1)
    sa, ca, ga, sb, cb, gb = (mod[:, 0].clone(), mod[:, 1].clone(), mod[:, 2].clone(), mod[:, 3].clone(), mod[:, 4].clone(), mod[:, 5].clone())
    h = _layernorm(x, axis=-1) * (1 + ca) + sa
    x = x + ga * _A_ref(h, A_log_A_real, A_A_imag, A_C_real, A_C_imag, A_log_dt, A_D_skip)
    h = _layernorm(x, axis=-1) * (1 + cb) + sb
    x = x + gb * _B_ref(h, B_w_gate, B_w_up, B_w_down)
    return x
```

```python
import re
from contextlib import contextmanager

REG_RE = re.compile(r"^(-|\|)?(abs\()?([vas])(\d+|\[(\d+):(\d+)\])\)?\|?$")


def regs_of(tok):
    tok = tok.strip()
    if tok in ("vcc", "exec", "m0", "scc"):
        return [tok]
    if tok in ("vcc_lo", "vcc_hi"):
        return ["vcc"]
    if tok in ("exec_lo", "exec_hi"):
        return ["exec"]
    m = REG_RE.match(tok)
    if not m:
        return []
    k = m.group(3)
    if m.group(5) is not None:
        return [(k, i) for i in range(int(m.group(5)), int(m.group(6)) + 1)]
    return [(k, int(m.group(4)))]


def split_ops(s):
    out, depth, cur = [], 0, ""
    for ch in s:
        if ch in "[(":
            depth += 1
        if ch in "])":
            depth -= 1
        if ch == "," and depth == 0:
            out.append(cur.strip())
            cur = ""
        else:
            cur += ch
    if cur.strip():
        out.append(cur.strip())
    return out


TRANS = ("v_exp_f32", "v_log_f32", "v_rcp_f32", "v_rsq_f32", "v_sqrt_f32", "v_sin_f32", "v_cos_f32")
NO_DST_SALU = ("s_cmp", "s_waitcnt", "s_barrier", "s_nop", "s_branch", "s_cbranch", "s_bitcmp", "s_sleep",
               "s_setprio", "s_endpgm", "s_setpc")


class Ins:
    __slots__ = ("text", "mn", "defs", "uses", "cls", "region", "tag", "srcc", "srcab", "passes", "dpp",
                 "store_data", "lds_dma", "raw", "mem_tag", "wide_store")

    def __init__(self, text, region=(), tag=None, raw=False):
        self.text = text
        self.region = region
        self.tag = tag
        self.raw = raw
        self.defs, self.uses = set(), set()
        self.srcc, self.srcab, self.store_data = set(), set(), set()
        self.passes = 0
        self.dpp = False
        self.lds_dma = False
        self.wide_store = False
        self.cls = "other"
        self.mn = ""
        if raw:
            return
        t = text.split(";")[0].strip()
        parts = t.split(None, 1)
        self.mn = mn = parts[0]
        rest = parts[1] if len(parts) > 1 else ""
        toks = split_ops(rest)
        mods = ""
        if toks:
            last = toks[-1].split(None, 1)
            if len(last) > 1 and not mn.startswith("s_waitcnt"):
                toks[-1] = last[0]
                mods = last[1]
        R = [regs_of(x) for x in toks]
        allr = lambda lst: set(r for x in lst for r in x)
        if mn.startswith("v_mfma"):
            self.cls = "mfma"
            self.defs = set(R[0])
            self.srcab = allr(R[1:3])
            self.srcc = set(R[3])
            self.uses = self.srcab | self.srcc
            self.passes = 8 if "32x32" in mn else 4
        elif mn.startswith("v_"):
            self.cls = "trans" if mn.replace("_e32", "").replace("_e64", "") in TRANS else "valu"
            if mn.startswith("v_cmp"):
                self.defs = set(R[0])
                self.uses = allr(R[1:])
            elif mn.startswith("v_permlane") and "swap" in mn:
                self.defs = allr(R[0:2])
                self.uses = allr(R[0:2])
            elif mn.startswith(("v_add_co", "v_sub_co", "v_addc_co", "v_subb_co", "v_subrev_co")):
                self.defs = allr(R[0:2])
                self.uses = allr(R[2:])
            else:
                self.defs = set(R[0])
                self.uses = allr(R[1:])
                if mn.startswith(("v_fmac", "v_dot2c", "v_pk_fmac", "v_mac", "v_writelane")):
                    self.uses |= set(R[0])
                if "dpp" in mn or "row_" in mods or "quad_perm" in mods:
                    self.dpp = True
                    self.uses |= set(R[0])
                if "UNUSED_PRESERVE" in mods:
                    self.uses |= set(R[0])
            self.uses.add("exec")
        elif mn.startswith("ds_"):
            self.cls = "ds"
            if mn.startswith(("ds_read", "ds_bpermute", "ds_permute", "ds_swizzle")):
                self.defs = set(R[0])
                self.uses = allr(R[1:])
                if "d16" in mn:
                    self.uses |= set(R[0])
            else:
                self.uses = allr(R)
        elif mn.startswith(("buffer_", "global_")):
            self.cls = "vmem"
            is_lds = mn.startswith("global_load_lds") or re.search(r"\blds\b", mods or "") is not None
            if mn == "buffer_inv" or mn == "buffer_wbl2":
                pass
            elif is_lds:
                self.lds_dma = True
                self.uses = allr(R) | {"m0"}
            elif "_load" in mn:
                self.defs = set(R[0])
                self.uses = allr(R[1:])
                if "d16" in mn:
                    self.uses |= set(R[0])
            elif "atomic" in mn and re.search(r"\bsc0\b", mods or ""):
                self.defs = set(R[0])
                self.uses = allr(R)
            else:
                self.uses = allr(R)
                data = R[0] if mn.startswith("buffer_") else R[1]
                self.store_data = set(data)
                self.wide_store = "x4" in mn or "x3" in mn
        elif mn.startswith(("s_load", "s_memtime", "s_memrealtime")):
            self.cls = "smem"
            self.defs = set(R[0])
            self.uses = allr(R[1:])
        elif mn.startswith("s_"):
            self.cls = "salu"
            if mn.startswith(NO_DST_SALU):
                self.uses = allr(R)
                if mn.startswith(("s_cmp", "s_bitcmp")):
                    self.defs = {"scc"}
                if mn.startswith("s_cbranch_scc"):
                    self.uses.add("scc")
                if mn.startswith("s_cbranch_vcc"):
                    self.uses.add("vcc")
                if mn.startswith("s_cbranch_exec"):
                    self.uses.add("exec")
            elif mn.startswith("s_getreg") or mn.startswith("s_getpc"):
                self.defs = set(R[0])
            else:
                self.defs = set(R[0])
                self.uses = allr(R[1:])
                if "saveexec" in mn:
                    self.defs.add("exec")
                    self.uses.add("exec")
                if mn.startswith(("s_addc", "s_subb", "s_cselect")):
                    self.uses.add("scc")
        else:
            raise ValueError("unknown instruction: " + text)


def is_v(r):
    return isinstance(r, tuple) and r[0] in "va"


def is_s(r):
    return (isinstance(r, tuple) and r[0] == "s") or r == "vcc"


class Gen:
    def __init__(self):
        self.ins = []
        self._stack = [self.ins]
        self._region = ()
        self._nreg = 0
        self._nlab = 0

    def __call__(self, text, tag=None):
        for line in text.strip().split("\n"):
            line = line.strip()
            if not line or line.startswith(";"):
                continue
            self._stack[-1].append(Ins(line, self._region, tag))

    def raw(self, text):
        self._stack[-1].append(Ins(text, self._region, raw=True))

    def label(self, name):
        self.raw(name + ":")

    def newlabel(self, base="L"):
        self._nlab += 1
        return f"{base}_{self._nlab}"

    def extend(self, lst):
        self._stack[-1].extend(lst)

    @contextmanager
    def capture(self):
        lst = []
        self._stack.append(lst)
        try:
            yield lst
        finally:
            self._stack.pop()

    @contextmanager
    def cond(self, branch_text):
        lab = self.newlabel("Lskip")
        self(f"{branch_text} {lab}")
        self._nreg += 1
        old = self._region
        self._region = old + (self._nreg,)
        try:
            yield
        finally:
            self._region = old
            self.label(lab)

    def wait_tag(self, tag):
        i = Ins("WAITTAG", self._region, raw=True)
        i.mn = "WAITTAG"
        i.tag = tag
        self._stack[-1].append(i)

    def barrier(self, lgkm=True):
        if lgkm:
            self("s_waitcnt lgkmcnt(0)")
        self("s_barrier")

    @staticmethod
    def interleave(main, fill, key=lambda i: i.cls == "mfma", start=0, per=None, end=None):
        keys = [n for n, i in enumerate(main) if key(i)]
        end = len(keys) if end is None else end
        slots = keys[start:end]
        out, fi = [], 0
        total = len(fill)
        pos = {k: n for n, k in enumerate(slots)}
        for n, i in enumerate(main):
            out.append(i)
            if n in pos:
                want = total * (pos[n] + 1) // len(slots) if per is None else min(total, per * (pos[n] + 1))
                while fi < want:
                    out.append(fill[fi])
                    fi += 1
        out.extend(fill[fi:])
        return out

    def finish(self):
        lst = self._auto_wait(self.ins)
        lst = self._hazards(lst)
        return "\n".join(("    " + i.text if not (i.raw and i.text.endswith(":")) else i.text) for i in lst) + "\n"

    @staticmethod
    def _definite(op_region, at_region):
        return at_region[:len(op_region)] == op_region

    def _auto_wait(self, lst):
        out = []
        vm, lg = [], []

        def need(pend, idx, region, cap):
            n = sum(1 for (x, _) in pend[idx + 1:] if self._definite(x.region, region))
            return min(n, cap)

        def retire(pend, n, region):
            keep, cnt = [], 0
            for item in reversed(pend):
                definite = self._definite(item[0].region, region)
                if cnt < n:
                    keep.append(item)
                    if definite:
                        cnt += 1
                else:
                    break
            return list(reversed(keep))

        for i in lst:
            if i.raw and i.mn == "WAITTAG":
                idxs = [k for k, (x, _) in enumerate(vm) if x.tag == i.tag]
                if idxs:
                    n = need(vm, idxs[-1], i.region, 63)
                    out.append(Ins(f"s_waitcnt vmcnt({n})", i.region))
                    if i.region == () or all(self._definite(i.region, i.region) for _ in [0]):
                        vm = retire(vm, n, i.region) if i.region == () else vm
                continue
            if i.raw:
                out.append(i)
                continue
            if i.mn == "s_waitcnt":
                m = re.search(r"vmcnt\((\d+)\)", i.text)
                if m and i.region == ():
                    vm = retire(vm, int(m.group(1)), i.region)
                elif m and int(m.group(1)) == 0:
                    vm = [x for x in vm if not self._definite(i.region, x[0].region) or x[0].region != i.region]
                m = re.search(r"lgkmcnt\((\d+)\)", i.text)
                if m:
                    n = int(m.group(1))
                    has_smem = any(x.cls == "smem" for x, _ in lg)
                    if n == 0 and i.region == ():
                        lg = []
                    elif n == 0:
                        lg = [x for x in lg if x[0].region != i.region]
                    elif not has_smem and i.region == ():
                        lg = retire(lg, n, i.region)
                out.append(i)
                continue
            touch = i.uses | i.defs
            vneed = [k for k, (x, r) in enumerate(vm) if r & touch]
            lneed = [k for k, (x, r) in enumerate(lg) if r & touch]
            parts = []
            if vneed:
                n = need(vm, vneed[-1], i.region, 63)
                parts.append(f"vmcnt({n})")
                if i.region == ():
                    vm = retire(vm, n, i.region)
                else:
                    done = set(id(vm[k][0]) for k in range(vneed[-1] + 1) if vm[k][0].region == i.region)
                    vm = [x for x in vm if id(x[0]) not in done]
            if lneed:
                has_smem = any(x.cls == "smem" for x, _ in lg)
                n = 0 if has_smem else need(lg, lneed[-1], i.region, 15)
                parts.append(f"lgkmcnt({n})")
                if i.region == ():
                    lg = [] if n == 0 else retire(lg, n, i.region)
                else:
                    done = set(id(lg[k][0]) for k in range(lneed[-1] + 1) if lg[k][0].region == i.region)
                    lg = [x for x in lg if id(x[0]) not in done]
            if parts:
                out.append(Ins("s_waitcnt " + " ".join(parts), i.region))
            out.append(i)
            if i.cls == "vmem":
                vm.append((i, set(i.defs)))
            elif i.cls in ("ds", "smem"):
                lg.append((i, set(i.defs)))
        return out

    def _hazards(self, lst):
        out = []

        def states(i):
            if i.raw:
                return 0
            if i.mn == "s_nop":
                return int(i.text.split()[1]) + 1
            return 1

        def anc(a, *bs):
            return any(b[:len(a)] == a for b in bs)

        for c in lst:
            if c.raw:
                out.append(c)
                continue
            need, dist = 0, 0
            for p in reversed(out[-64:]):
                if dist >= 20:
                    break
                req = self._req(p, c) if not p.raw else 0
                if req > dist:
                    need = max(need, req - dist)
                if anc(p.region, c.region) or not p.raw and False:
                    dist += states(p)
            while need > 0:
                n = min(need, 16)
                out.append(Ins(f"s_nop {n - 1}", c.region))
                need -= n
            out.append(c)
        return out

    @staticmethod
    def _req(p, c):
        r = 0
        cv_touch = c.uses | c.defs
        if p.cls in ("valu", "trans"):
            pv = set(x for x in p.defs if is_v(x))
            ps = set(x for x in p.defs if is_s(x))
            if pv:
                if c.cls == "mfma" and pv & c.uses:
                    r = max(r, 2)
                if c.dpp and pv & c.uses:
                    r = max(r, 2)
                if c.mn.startswith("v_permlane") and pv & c.uses:
                    r = max(r, 2)
                if c.mn.startswith(("v_readlane", "v_readfirstlane")) and pv & c.uses:
                    r = max(r, 1)
                if p.cls == "trans" and c.cls in ("valu", "mfma") and pv & c.uses:
                    r = max(r, 1)
                if ("sdwa" in p.mn or "op_sel" in p.text and not p.mn.startswith("v_pk")) and c.cls in ("valu", "trans") and pv & cv_touch:
                    r = max(r, 1)
            if ps:
                if c.cls in ("valu", "trans") and ps & c.uses:
                    r = max(r, 4 if c.mn.startswith(("v_readlane", "v_writelane")) else 2)
                if c.cls == "vmem" and ps & c.uses:
                    r = max(r, 5)
            if p.mn.startswith("v_dot") and c.cls in ("valu", "trans", "mfma", "vmem", "ds") and pv & cv_touch:
                same_acc = c.mn == p.mn and not (pv & (c.uses - c.defs))
                if not same_acc:
                    r = max(r, 3)
            if "exec" in p.defs and c.cls != "salu":
                r = max(r, 5 if c.dpp else 4)
        if p.cls == "mfma":
            big = p.passes == 8
            if p.defs & cv_touch:
                if c.cls == "mfma":
                    if p.defs & c.srcab:
                        r = max(r, 12 if big else 8)
                    if p.defs & c.srcc and not (p.defs == c.srcc and p.passes == c.passes):
                        r = max(r, 10 if big else 6)
                    elif p.defs & c.defs and not p.defs & c.srcc:
                        r = max(r, 12 if big else 8)
                elif c.cls in ("valu", "trans", "vmem", "ds"):
                    r = max(r, 12 if big else 8)
            if c.cls in ("valu", "trans") and p.srcc & c.defs:
                r = max(r, 7 if big else 3)
        if p.cls == "salu" and "m0" in p.defs and (c.lds_dma):
            r = max(r, 1)
        if p.cls == "vmem" and p.wide_store and p.store_data & c.defs:
            r = max(r, 2 if c.cls in ("valu", "trans") else 1)
        return r
```

```python
from gen import *


def post_b1_loads(k):
    g, V = k.g, k.V
    vL, vT = k.vLane, k.vTid
    t0, t1, t2, t3 = k.p1["T"]
    p = {}
    p["ucol"] = ucol = V.alloc(8, 4)
    p["S"] = S = V.alloc(16, 4)
    p["sa"], p["ca"], p["ga"] = V.alloc(2, 2), V.alloc(2, 2), V.alloc(2, 2)
    p["cb"], p["sb"] = V.alloc(4, 2), V.alloc(4, 2)
    ws = sr(R_WS, 4)
    g(f"s_lshl_b32 s{S_T0}, s{S_D0}, 12")
    g(f"s_add_u32 s{S_T0}, s{S_T0}, {UP}")
    g(f"v_lshlrev_b32 v{t0}, 5, v{vT}")
    g(f"buffer_load_dwordx4 {vr(ucol, 4)}, v{t0}, {ws}, s{S_T0} offen sc1")
    g(f"buffer_load_dwordx4 {vr(ucol + 4, 4)}, v{t0}, {ws}, s{S_T0} offen offset:16 sc1")
    g(f"v_lshlrev_b32 v{t1}, 6, v{vT}")
    g(f"s_mov_b32 s{S_T1}, {STATS}")
    for i in range(4):
        g(f"buffer_load_dwordx4 {vr(S + 4 * i, 4)}, v{t1}, {ws}, s{S_T1} offen offset:{16 * i} sc1")
    g(f"s_lshl_b32 s{S_T2}, s{S_D0}, 2")
    g(f"s_add_u32 s{S_T2}, s{S_T2}, {MOD}")
    g(f"v_mov_b32 v{t2}, 0")
    g(f"buffer_load_dwordx2 {vr(p['sa'], 2)}, v{t2}, {ws}, s{S_T2} offen sc1")
    g(f"buffer_load_dwordx2 {vr(p['ca'], 2)}, v{t2}, {ws}, s{S_T2} offen offset:2048 sc1")
    g(f"s_add_u32 s{S_T3}, s{S_T2}, 4096")
    g(f"buffer_load_dwordx2 {vr(p['ga'], 2)}, v{t2}, {ws}, s{S_T3} offen sc1")
    g(f"s_lshl_b32 s{S_T3}, s{S_DH}, 8")
    g(f"s_lshl_b32 s{S_T4}, s{S_WV}, 4")
    g(f"s_add_u32 s{S_T3}, s{S_T3}, s{S_T4}")
    g(f"v_lshrrev_b32 v{t3}, 2, v{vL}")
    g(f"v_add_u32 v{t3}, s{S_T3}, v{t3}")
    g(f"v_lshlrev_b32 v{t3}, 2, v{t3}")
    g(f"s_mov_b32 s{S_T3}, {MOD + 4 * 2048}")
    g(f"s_mov_b32 s{S_T4}, {MOD + 3 * 2048}")
    for i in range(4):
        g(f"buffer_load_dword v{p['cb'] + i}, v{t3}, {ws}, s{S_T3} offen offset:{256 * i} sc1")
    for i in range(4):
        g(f"buffer_load_dword v{p['sb'] + i}, v{t3}, {ws}, s{S_T4} offen offset:{256 * i} sc1")
    return p


def h_compute(k, p):
    g, V = k.g, k.V
    vT = k.vTid
    t0, t1, t2, t3 = k.p1["T"]
    ucol, S, sa, ca, ga = p["ucol"], p["S"], p["sa"], p["ca"], p["ga"]
    gd = V.alloc(2, 2)
    g(f"v_add_f32 v{ca}, 1.0, v{ca}")
    g(f"v_add_f32 v{ca + 1}, 1.0, v{ca + 1}")
    g(f"v_cvt_pk_bf16_f32 v{t0}, v{ca}, v{ca + 1}")
    g(f"s_lshl_b32 s{S_T0}, s{S_DSK}, 16")
    g(f"s_and_b32 s{S_T1}, s{S_DSK}, 0xffff0000")
    g(f"v_lshlrev_b32 v{ca}, 16, v{t0}")
    g(f"v_and_b32 v{ca + 1}, 0xffff0000, v{t0}")
    g(f"v_mul_f32 v{gd}, s{S_T0}, v{ga}")
    g(f"v_mul_f32 v{gd + 1}, s{S_T1}, v{ga + 1}")
    X = V.alloc(16, 4)
    H = V.alloc(8, 4)
    Bz = V.alloc(8, 4)
    hp = V.alloc(8, 4)
    g(f"v_lshlrev_b32 v{t0}, 4, v{vT}")
    g(f"v_add_u32 v{t0}, {HB + 480}, v{t0}")
    g(f"v_lshlrev_b32 v{t1}, 5, v{vT}")
    g(f"v_add_u32 v{t1}, {BASE}, v{t1}")
    for e in range(8):
        g(f"v_lshlrev_b32 v{X + e}, 16, v{ucol + e}")
        g(f"v_and_b32 v{X + 8 + e}, 0xffff0000, v{ucol + e}")
    for ch in range(2):
        x = X + 8 * ch
        sel = f"op_sel:[0,{ch},{ch}] op_sel_hi:[1,{ch},{ch}]"
        for q in range(4):
            g(f"v_pk_fma_f32 {vr(H + 2 * q, 2)}, {vr(x + 2 * q, 2)}, {vr(S + 4 * q, 2)}, {vr(S + 4 * q + 2, 2)}")
        for q in range(4):
            g(f"v_pk_fma_f32 {vr(H + 2 * q, 2)}, {vr(H + 2 * q, 2)}, {vr(ca, 2)}, {vr(sa, 2)} {sel}")
        for q in range(4):
            g(f"v_cvt_pk_bf16_f32 v{hp + 4 * ch + q}, v{H + 2 * q}, v{H + 2 * q + 1}")
        g(f"ds_write_b128 v{t0}, {vr(hp + 4 * ch, 4)} offset:{ch * HB_CH}")
        for q in range(4):
            g(f"v_pk_fma_f32 {vr(Bz + 2 * q, 2)}, {vr(H + 2 * q, 2)}, {vr(gd, 2)}, {vr(x + 2 * q, 2)} "
              f"op_sel:[0,{ch},0] op_sel_hi:[1,{ch},1]")
        g(f"ds_write_b128 v{t1}, {vr(Bz, 4)} offset:{ch * BASE_CH}")
        g(f"ds_write_b128 v{t1}, {vr(Bz + 4, 4)} offset:{ch * BASE_CH + 16}")
        if ch == 0:
            g("s_nop 1")
    V.release(X, 16); V.release(H, 8); V.release(Bz, 8); V.release(hp, 8); V.release(gd, 2)
    V.release(ucol, 8); V.release(S, 16); V.release(sa, 2); V.release(ca, 2)


def wprep_stream(k, p):
    g, V = k.g, k.V
    vL = k.vLane
    wpre, cb, sb = k.wpre, p["cb"], p["sb"]
    st = {}
    st["acc"] = acc = V.alloc(16, 2)
    w = V.alloc(8, 2)
    pr = V.alloc(8, 2)
    st["out"] = out = V.alloc(16, 4)
    tt = V.alloc(1)
    with g.capture() as lst:
        for i in range(4):
            g(f"v_add_f32 v{cb + i}, 1.0, v{cb + i}")
        for i in range(4):
            g(f"v_cvt_pk_bf16_f32 v{cb + i}, v{cb + i}, v{cb + i}")
        for i in range(4):
            g(f"v_lshlrev_b32 v{cb + i}, 16, v{cb + i}")
        for i in range(4):
            for q in range(4):
                g(f"v_lshlrev_b32 v{w + 2 * q}, 16, v{wpre + 4 * i + q}")
                g(f"v_and_b32 v{w + 2 * q + 1}, 0xffff0000, v{wpre + 4 * i + q}")
            dst = acc if i == 0 else pr
            for e in range(8):
                g(f"v_mul_f32 v{dst + e}, v{cb + i}, v{w + e}")
            for e in range(8):
                if i == 0:
                    g(f"v_mul_f32 v{acc + 8 + e}, v{sb + i}, v{w + e}")
                else:
                    g(f"v_fmac_f32 v{acc + 8 + e}, v{sb + i}, v{w + e}")
            for q in range(4):
                g(f"v_cvt_pk_bf16_f32 v{out + 4 * i + q}, v{dst + 2 * q}, v{dst + 2 * q + 1}")
            if i:
                for e in range(8):
                    g(f"v_add_f32 v{acc + e}, v{acc + e}, v{pr + e}")
        for e in range(8):
            g(f"v_permlane32_swap_b32 v{acc + e}, v{acc + 8 + e}")
        for e in range(8):
            g(f"v_add_f32 v{acc + e}, v{acc + e}, v{acc + 8 + e}")
        for e in range(4):
            g(f"v_permlane16_swap_b32 v{acc + e}, v{acc + 4 + e}")
        for e in range(4):
            g(f"v_add_f32 v{acc + e}, v{acc + e}, v{acc + 4 + e}")
        for sh in (4, 8):
            for e in range(4):
                g(f"v_add_f32_dpp v{acc + e}, v{acc + e}, v{acc + e} row_shr:{sh} row_mask:0xf bank_mask:0xf")
    st['tmp'] = [(w, 8), (pr, 8), (tt, 1)]
    return lst, st


def wprep_store(k, p, st):
    g, V = k.g, k.V
    vL = k.vLane
    t0, t1, t2, t3 = k.p1["T"]
    acc, out = st["acc"], st["out"]
    g(f"v_lshrrev_b32 v{t0}, 5, v{vL}")
    g(f"v_lshlrev_b32 v{t0}, 7, v{t0}")
    g(f"v_and_b32 v{t1}, 3, v{vL}")
    g(f"v_lshl_add_u32 v{t0}, v{t1}, 5, v{t0}")
    g(f"v_bfe_u32 v{t1}, v{vL}, 4, 1")
    g(f"v_lshl_add_u32 v{t0}, v{t1}, 4, v{t0}")
    g(f"s_lshl_b32 s{S_T0}, s{S_WV}, 8")
    g(f"s_add_u32 s{S_T0}, s{S_T0}, {MISC + 1024}")
    g(f"v_add_u32 v{t0}, s{S_T0}, v{t0}")
    g(f"s_mov_b64 {sr(S_EX, 2)}, exec")
    g(f"s_mov_b32 exec_lo, 0xf000f000")
    g(f"s_mov_b32 exec_hi, 0xf000f000")
    g(f"ds_write_b128 v{t0}, {vr(acc, 4)}")
    g(f"s_mov_b64 exec, {sr(S_EX, 2)}")
    g(f"s_cmp_eq_u32 s{S_WACT}, 0")
    with g.cond("s_cbranch_scc1"):
        g(f"s_mul_i32 s{S_T0}, s{S_MT}, {WP_MT}")
        g(f"s_lshl_b32 s{S_T1}, s{S_DH}, 14")
        g(f"s_add_u32 s{S_T0}, s{S_T0}, s{S_T1}")
        g(f"s_lshl_b32 s{S_T1}, s{S_WV}, 10")
        g(f"s_add_u32 s{S_T0}, s{S_T0}, s{S_T1}")
        g(f"s_add_u32 s{S_T0}, s{S_T0}, {WP}")
        g(f"v_lshlrev_b32 v{t1}, 4, v{vL}")
        for i in range(4):
            g(f"buffer_store_dwordx4 {vr(out + 4 * i, 4)}, v{t1}, {sr(R_WS, 4)}, s{S_T0} offen sc1")
            if i < 3:
                g(f"s_add_u32 s{S_T0}, s{S_T0}, 4096")
    V.release(acc, 16)
    V.release(p["cb"], 4); V.release(p["sb"], 4)


def wprep_ext(k, st):
    g, V = k.g, k.V
    vL = k.vLane
    t0, t1, t2, t3 = k.p1["T"]
    x = V.alloc(4, 4)
    g(f"s_cmp_lg_u32 s{S_WV}, 0")
    with g.cond("s_cbranch_scc1"):
        g(f"s_cmp_eq_u32 s{S_WACT}, 0")
        with g.cond("s_cbranch_scc1"):
            g(f"v_lshlrev_b32 v{t0}, 2, v{vL}")
            g(f"v_add_u32 v{t0}, {MISC + 1024}, v{t0}")
            for w in range(4):
                g(f"ds_read_b32 v{x + w}, v{t0} offset:{256 * w}")
            g(f"v_lshrrev_b32 v{t1}, 5, v{vL}")
            g(f"v_lshlrev_b32 v{t1}, 7, v{t1}")
            g(f"v_and_b32 v{t2}, 31, v{vL}")
            g(f"v_lshl_add_u32 v{t1}, v{t2}, 1, v{t1}")
            g(f"v_add_u32 v{t1}, {MISC + 2048}, v{t1}")
            g(f"v_add_f32 v{x}, v{x}, v{x + 1}")
            g(f"v_add_f32 v{x + 2}, v{x + 2}, v{x + 3}")
            g(f"v_add_f32 v{x}, v{x}, v{x + 2}")
            g(f"v_cvt_pk_bf16_f32 v{x + 1}, v{x}, v{x}")
            g(f"v_lshlrev_b32 v{x + 2}, 16, v{x + 1}")
            g(f"v_sub_f32 v{x + 2}, v{x}, v{x + 2}")
            g(f"v_cvt_pk_bf16_f32 v{x + 2}, v{x + 2}, v{x + 2}")
            g(f"ds_write_b16 v{t1}, v{x + 1}")
            g(f"ds_write_b16 v{t1}, v{x + 2} offset:64")
            g(f"v_and_b32 v{t2}, 15, v{vL}")
            g(f"v_lshlrev_b32 v{t2}, 4, v{t2}")
            g(f"v_add_u32 v{t3}, {MISC + 2048}, v{t2}")
            g("s_waitcnt lgkmcnt(0)")
            g(f"ds_read_b128 {vr(x, 4)}, v{t3}")
            g(f"s_mul_i32 s{S_T0}, s{S_MT}, {WP_MT}")
            g(f"s_lshl_b32 s{S_T1}, s{S_DH}, 8")
            g(f"s_add_u32 s{S_T0}, s{S_T0}, s{S_T1}")
            g(f"s_add_u32 s{S_T0}, s{S_T0}, {WP + 512 * 64}")
            g(f"s_mov_b64 {sr(S_EX, 2)}, exec")
            g(f"s_mov_b64 exec, 0xffff")
            g(f"buffer_store_dwordx4 {vr(x, 4)}, v{t2}, {sr(R_WS, 4)}, s{S_T0} offen sc1")
            g(f"s_mov_b64 exec, {sr(S_EX, 2)}")
    g("s_nop 1")
    V.release(x, 4)


def conv(k, p, fill):
    g, V = k.g, k.V
    vL = k.vLane
    t0, t1, t2, t3 = k.p1["T"]
    acc = V.alloc(32, 4)
    A = [V.alloc(32, 4), V.alloc(32, 4)]
    B = [k.A.alloc(32, 4), k.A.alloc(32, 4)]
    aA, aB = V.alloc(1), V.alloc(1)
    g(f"v_and_b32 v{t0}, 3, v{vL}")
    g(f"v_sub_u32 v{t0}, 3, v{t0}")
    g(f"v_mul_u32_u24 v{t0}, {KT_COPY}, v{t0}")
    g(f"v_bfe_u32 v{t1}, v{vL}, 2, 2")
    g(f"v_lshlrev_b32 v{t1}, 3, v{t1}")
    g(f"v_sub_u32 v{t0}, v{t0}, v{t1}")
    g(f"v_lshrrev_b32 v{t1}, 4, v{vL}")
    g(f"v_lshl_add_u32 v{t0}, v{t1}, 4, v{t0}")
    g(f"s_mul_i32 s{S_T0}, s{S_CH}, {KT_CH}")
    g(f"s_lshl_b32 s{S_T1}, s{S_NH}, 8")
    g(f"s_sub_u32 s{S_T0}, s{S_T0}, s{S_T1}")
    g(f"s_add_u32 s{S_T0}, s{S_T0}, {KT + 24}")
    g(f"v_add_u32 v{aA}, s{S_T0}, v{t0}")
    g(f"v_and_b32 v{t0}, 15, v{vL}")
    g(f"v_lshlrev_b32 v{t0}, 5, v{t0}")
    g(f"v_lshl_add_u32 v{t0}, v{t1}, 4, v{t0}")
    g(f"s_mul_i32 s{S_T0}, s{S_CH}, {HB_CH}")
    g(f"s_lshl_b32 s{S_T1}, s{S_NH}, 8")
    g(f"s_sub_u32 s{S_T0}, s{S_T0}, s{S_T1}")
    g(f"s_add_u32 s{S_T0}, s{S_T0}, {HB + 448 - 192}")
    g(f"v_add_u32 v{aB}, s{S_T0}, v{t0}")
    g.barrier()

    def loads(bi):
        s = bi & 1
        lst = []
        for c in range(8):
            a = c
            lst.append(f"ds_read_b128 {ar(B[s] + 4 * c, 4)}, v{aB} offset:{512 * c + 64 * (3 - bi)}")
            off = 64 * (63 - 8 * a - bi)
            lst.append(f"ds_read_b64 {vr(A[s] + 4 * a, 2)}, v{aA} offset:{off}")
            lst.append(f"ds_read_b64 {vr(A[s] + 4 * a + 2, 2)}, v{aA} offset:{off + 8}")
        return lst

    def mfmas(bi):
        s = bi & 1
        lst = []
        for top in range(8):
            for a in range(top + 1):
                prs = [(a, top)] if a == top else [(a, top), (top, a)]
                for (aa, cc) in prs:
                    n = aa + cc
                    if n < 8:
                        lst.append((aa, cc, n))
        return lst

    first = set()
    for s_ in loads(0):
        g(s_)
    main = []
    for bi in range(4):
        s = bi & 1
        ms = mfmas(bi)
        nxt = loads(bi + 1) if bi < 3 else []
        with g.capture() as seg:
            li = 0
            for idx, (aa, cc, n) in enumerate(ms):
                c_op = vr(acc + 4 * n, 4) if n in first else "0"
                first.add(n)
                g(f"v_mfma_f32_16x16x32_bf16 {vr(acc + 4 * n, 4)}, {vr(A[s] + 4 * aa, 4)}, {ar(B[s] + 4 * cc, 4)}, {c_op}")
                want = len(nxt) * (idx + 1) // max(1, len(ms) - 6)
                while li < min(want, len(nxt)):
                    g(nxt[li])
                    li += 1
            while li < len(nxt):
                g(nxt[li])
                li += 1
        main.extend(seg)
    merged = Gen.interleave(main, fill, key=lambda i: i.cls == "mfma", start=4, end=140)
    g.extend(merged)
    for s in range(2):
        V.release(A[s], 32)
        k.A.release(B[s], 32)
    V.release(aA); V.release(aB)
    return acc


def conv_epilogue(k, p, acc):
    g, V = k.g, k.V
    vL = k.vLane
    t0, t1, t2, t3 = k.p1["T"]
    ga = p["ga"]
    res = V.alloc(16, 4)
    bs = V.alloc(16, 4)
    g(f"v_and_b32 v{t0}, 15, v{vL}")
    g(f"v_lshlrev_b32 v{t0}, 6, v{t0}")
    g(f"v_lshrrev_b32 v{t1}, 4, v{vL}")
    g(f"v_lshl_add_u32 v{t0}, v{t1}, 4, v{t0}")
    g(f"s_lshl_b32 s{S_T0}, s{S_CH}, 13")
    g(f"s_lshl_b32 s{S_T1}, s{S_NH}, 12")
    g(f"s_add_u32 s{S_T0}, s{S_T0}, s{S_T1}")
    g(f"s_add_u32 s{S_T0}, s{S_T0}, {BASE}")
    g(f"v_add_u32 v{t0}, s{S_T0}, v{t0}")
    for q in range(4):
        g(f"ds_read_b128 {vr(bs + 4 * q, 4)}, v{t0} offset:{1024 * q}")
    g(f"s_lshl_b32 s{S_T0}, s{S_WV}, 12")
    g(f"s_add_u32 s{S_T0}, s{S_T0}, {KX}")
    g(f"v_lshl_add_u32 v{t2}, v{vL}, 4, s{S_T0}")
    g(f"s_xor_b32 s{S_T0}, s{S_WV}, 1")
    g(f"s_lshl_b32 s{S_T0}, s{S_T0}, 12")
    g(f"s_add_u32 s{S_T0}, s{S_T0}, {KX}")
    g(f"v_lshl_add_u32 v{t3}, v{vL}, 4, s{S_T0}")
    g(f"s_cmp_eq_u32 s{S_NH}, 0")
    with g.cond("s_cbranch_scc0"):
        for q in range(4):
            g(f"ds_write_b128 v{t2}, {vr(acc + 16 + 4 * q, 4)} offset:{1024 * q}")
    g(f"s_cmp_eq_u32 s{S_NH}, 1")
    with g.cond("s_cbranch_scc0"):
        for q in range(4):
            g(f"ds_write_b128 v{t2}, {vr(acc + 4 * q, 4)} offset:{1024 * q}")
    g.barrier()
    for q in range(4):
        g(f"ds_read_b128 {vr(res + 4 * q, 4)}, v{t3} offset:{1024 * q}")
    gv = V.alloc(1)
    g(f"s_cmp_eq_u32 s{S_CH}, 0")
    g(f"s_cselect_b64 vcc, -1, 0")
    g(f"v_cndmask_b32 v{gv}, v{ga + 1}, v{ga}, vcc")
    g(f"s_cmp_eq_u32 s{S_NH}, 0")
    with g.cond("s_cbranch_scc0"):
        for i in range(16):
            g(f"v_add_f32 v{res + i}, v{res + i}, v{acc + i}")
    g(f"s_cmp_eq_u32 s{S_NH}, 1")
    with g.cond("s_cbranch_scc0"):
        for i in range(16):
            g(f"v_add_f32 v{res + i}, v{res + i}, v{acc + 16 + i}")
    for i in range(16):
        g(f"v_fmac_f32 v{bs + i}, v{gv}, v{res + i}")
    Q = V.alloc(8, 4)
    for pr in range(2):
        for hh in range(2):
            b = bs + 8 * pr + 4 * hh
            g(f"v_cvt_pk_bf16_f32 v{Q + 4 * pr + 2 * hh}, v{b}, v{b + 1}")
            g(f"v_cvt_pk_bf16_f32 v{Q + 4 * pr + 2 * hh + 1}, v{b + 2}, v{b + 3}")
    g(f"v_and_b32 v{t0}, 15, v{vL}")
    g(f"v_lshlrev_b32 v{t0}, 5, v{t0}")
    g(f"v_bfe_u32 v{t1}, v{vL}, 4, 1")
    g(f"v_lshl_add_u32 v{t0}, v{t1}, 9, v{t0}")
    g(f"v_lshrrev_b32 v{t1}, 5, v{vL}")
    g(f"v_lshl_add_u32 v{t0}, v{t1}, 4, v{t0}")
    g(f"s_add_u32 s{S_T0}, s{S_D0}, s{S_CH}")
    g(f"s_lshl_b32 s{S_T0}, s{S_T0}, 12")
    g(f"s_lshl_b32 s{S_T1}, s{S_NH}, 11")
    g(f"s_add_u32 s{S_T0}, s{S_T0}, s{S_T1}")
    g(f"s_add_u32 s{S_T0}, s{S_T0}, {X2T}")
    for pr in range(2):
        g(f"v_permlane16_swap_b32 v{Q + 4 * pr}, v{Q + 4 * pr + 2}")
        g(f"v_permlane16_swap_b32 v{Q + 4 * pr + 1}, v{Q + 4 * pr + 3}")
    for pr in range(2):
        g(f"buffer_store_dwordx4 {vr(Q + 4 * pr, 4)}, v{t0}, {sr(R_WS, 4)}, s{S_T0} offen offset:{1024 * pr} sc1")
    g("s_nop 1")
    V.release(res, 16); V.release(bs, 16); V.release(Q, 8); V.release(gv)
    V.release(acc, 32); V.release(ga, 2)


def phase2(k):
    g, V = k.g, k.V
    p = post_b1_loads(k)
    k.stamp("p2 loads")
    k.kgen_expand()
    g("s_cmp_ge_u32 s2, 172")
    with g.cond("s_cbranch_scc1"):
        k.wd_relayout(k.p1["T"])
    k.stamp("expand")
    h_compute(k, p)
    k.stamp("h")
    fill, st = wprep_stream(k, p)
    acc = conv(k, p, fill)
    for r, n in st["tmp"]:
        V.release(r, n)
    k.stamp("conv")
    wprep_store(k, p, st)
    conv_epilogue(k, p, acc)
    wprep_ext(k, st)
    V.release(st["out"], 16)
    V.release(k.wpre, 16)
    k.stamp("p2 epi")
    g(f"s_and_b32 s{S_T5}, s2, 15")
    k.arrive(CNT_B2, S_T5)
    k.stamp("arrive2")
```

```python
from gen import *

S_RB, S_CB = 78, 79
S_SW = 80
S_MW, S_MX = 86, 87
S_SX = 90
SLOT = 40960
XOFF = 24576
EXTB = 122880
STATX = 125952
C1G = -2.0 * 0.7978845608028654 * LOG2E
C2G = C1G * 0.044715


def stats_loads(k, st):
    g, V = k.g, k.V
    t0 = st["t"]
    g(f"s_lshl_b32 s{S_T0}, s{S_RB}, 8")
    g(f"s_lshl_b32 s{S_T1}, s{S_CB}, 4")
    g(f"s_add_u32 s{S_T0}, s{S_T0}, s{S_T1}")
    g(f"s_add_u32 s{S_T0}, s{S_T0}, {X2T}")
    g(f"s_add_u32 s{S_T1}, s{S_T0}, {256 * 4096}")
    g(f"v_lshlrev_b32 v{t0}, 12, v{k.vTid}")
    g(f"buffer_load_dwordx4 {vr(st['raw'], 4)}, v{t0}, {sr(R_WS, 4)}, s{S_T0} offen sc1")
    g(f"buffer_load_dwordx4 {vr(st['raw'] + 4, 4)}, v{t0}, {sr(R_WS, 4)}, s{S_T1} offen sc1")


def stats_partials(k, st):
    g = k.g
    vL = k.vLane
    raw, a, b, acc, t0 = st["raw"], st["a"], st["b"], st["acc"], st["t"]
    for q in range(4):
        g(f"v_lshlrev_b32 v{a + 2 * q}, 16, v{raw + q}")
        g(f"v_and_b32 v{a + 2 * q + 1}, 0xffff0000, v{raw + q}")
        g(f"v_lshlrev_b32 v{b + 2 * q}, 16, v{raw + 4 + q}")
        g(f"v_and_b32 v{b + 2 * q + 1}, 0xffff0000, v{raw + 4 + q}")
    for e in range(8):
        g(f"v_add_f32 v{acc + e}, v{a + e}, v{b + e}")
        g(f"v_mul_f32 v{acc + 8 + e}, v{a + e}, v{a + e}")
    for e in range(8):
        g(f"v_fmac_f32 v{acc + 8 + e}, v{b + e}, v{b + e}")
    for e in range(8):
        g(f"v_permlane32_swap_b32 v{acc + e}, v{acc + 8 + e}")
    for e in range(8):
        g(f"v_add_f32 v{acc + e}, v{acc + e}, v{acc + 8 + e}")
    for e in range(4):
        g(f"v_permlane16_swap_b32 v{acc + e}, v{acc + 4 + e}")
    for e in range(4):
        g(f"v_add_f32 v{acc + e}, v{acc + e}, v{acc + 4 + e}")
    for sh in (1, 2, 4, 8):
        for e in range(4):
            g(f"v_add_f32_dpp v{acc + e}, v{acc + e}, v{acc + e} row_shr:{sh} row_mask:0xf bank_mask:0xf")
    g(f"v_lshrrev_b32 v{t0}, 4, v{vL}")
    g(f"v_lshlrev_b32 v{t0}, 4, v{t0}")
    g(f"s_lshl_b32 s{S_T0}, s{S_WV}, 6")
    g(f"s_add_u32 s{S_T0}, s{S_T0}, {STATX}")
    g(f"v_add_u32 v{t0}, s{S_T0}, v{t0}")
    g(f"s_mov_b64 {sr(S_EX, 2)}, exec")
    g(f"s_mov_b32 exec_lo, 0x80008000")
    g(f"s_mov_b32 exec_hi, 0x80008000")
    g(f"ds_write_b128 v{t0}, {vr(acc, 4)}")
    g(f"s_mov_b64 exec, {sr(S_EX, 2)}")


def stats_final(k, st):
    g = k.g
    vL = k.vLane
    a, b, t0 = st["a"], st["b"], st["t"]
    g(f"v_and_b32 v{t0}, 7, v{vL}")
    g(f"v_lshlrev_b32 v{t0}, 2, v{t0}")
    g(f"v_add_u32 v{t0}, {STATX}, v{t0}")
    for w in range(4):
        g(f"ds_read_b32 v{a + w}, v{t0} offset:{64 * w}")
        g(f"ds_read_b32 v{a + 4 + w}, v{t0} offset:{64 * w + 32}")
    g(f"v_add_f32 v{a}, v{a}, v{a + 1}")
    g(f"v_add_f32 v{a + 4}, v{a + 4}, v{a + 5}")
    g(f"v_add_f32 v{a + 2}, v{a + 2}, v{a + 3}")
    g(f"v_add_f32 v{a + 6}, v{a + 6}, v{a + 7}")
    g(f"v_add_f32 v{a}, v{a}, v{a + 2}")
    g(f"v_add_f32 v{a + 4}, v{a + 4}, v{a + 6}")
    s1, s2 = a, a + 4
    g(f"v_mul_f32 v{s1}, {fl(1.0 / 512)}, v{s1}")
    g(f"v_mul_f32 v{s2}, {fl(1.0 / 512)}, v{s2}")
    g(f"v_fma_f32 v{s2}, -v{s1}, v{s1}, v{s2}")
    g(f"v_cvt_pk_bf16_f32 v{b}, -v{s1}, -v{s1}")
    g(f"v_max_f32 v{s2}, 0, v{s2}")
    k.bf16_round(s2, s2)
    g(f"v_add_f32 v{s2}, {fl(1e-5)}, v{s2}")
    k.bf16_round(s2, s2)
    g(f"v_sqrt_f32 v{s2}, v{s2}")
    g(f"s_lshl_b32 s{S_T0}, s{S_RB}, 10")
    g(f"s_lshl_b32 s{S_T1}, s{S_CB}, 6")
    g(f"s_add_u32 s{S_T0}, s{S_T0}, s{S_T1}")
    g(f"s_add_u32 s{S_T0}, s{S_T0}, {LN2S}")
    g(f"v_cvt_pk_bf16_f32 v{b + 1}, v{s2}, v{s2}")
    g(f"v_lshl_add_u32 v{t0}, v{vL}, 3, s{S_T0}")


def stats_store(k, st):
    g = k.g
    g(f"s_cmp_lg_u32 s{S_WV}, 0")
    with g.cond("s_cbranch_scc1"):
        g(f"s_mov_b64 {sr(S_EX, 2)}, exec")
        g(f"s_mov_b64 exec, 0xff")
        g(f"buffer_store_dwordx2 {vr(st['b'], 2)}, v{st['t']}, {sr(R_WS, 4)}, 0 offen sc1", tag="ln2st")
        g(f"s_mov_b64 exec, {sr(S_EX, 2)}")


def count_up(k, cnt, shard, t0, t1):
    g = k.g
    g(f"s_cmp_lg_u32 s{S_WV}, 0")
    with g.cond("s_cbranch_scc1"):
        g(f"s_lshl_b32 s{S_T0}, s{shard}, 8")
        g(f"s_add_u32 s{S_T0}, s{S_T0}, {cnt}")
        g(f"v_mov_b32 v{t0}, s{S_T0}")
        g(f"v_mov_b32 v{t1}, 1")
        g(f"s_mov_b64 {sr(S_EX, 2)}, exec")
        g(f"s_mov_b64 exec, 1")
        g(f"buffer_atomic_add v{t1}, v{t0}, {sr(R_WS, 4)}, 0 offen sc1", tag="atom")
        g(f"s_mov_b64 exec, {sr(S_EX, 2)}")


def phase3(k):
    g, V = k.g, k.V
    vL = k.vLane
    tb = k.p1["T"][0]
    t0, t1, t2, t3 = k.p1["T"]
    ws = sr(R_WS, 4)

    g(f"s_and_b32 s{S_T0}, s{S_X}, 1")
    g(f"s_lshl_b32 s{S_T0}, s{S_T0}, 3")
    g(f"s_and_b32 s{S_T1}, s{S_J}, 7")
    g(f"s_add_u32 s{S_RB}, s{S_T0}, s{S_T1}")
    g(f"s_lshr_b32 s{S_T0}, s{S_X}, 1")
    g(f"s_lshl_b32 s{S_T0}, s{S_T0}, 2")
    g(f"s_lshr_b32 s{S_T1}, s{S_J}, 3")
    g(f"s_add_u32 s{S_CB}, s{S_T0}, s{S_T1}")
    g(f"s_mul_i32 s{S_T0}, s{S_CB}, 6")
    g(f"s_lshl_b32 s{S_T1}, s{S_WV}, 10")
    for mt in range(6):
        g(f"s_add_u32 s{S_T2}, s{S_T0}, {mt}")
        g(f"s_min_u32 s{S_T2}, s{S_T2}, 85")
        g(f"s_mul_i32 s{S_T2}, s{S_T2}, {WP_MT}")
        g(f"s_add_u32 s{S_T2}, s{S_T2}, s{S_T1}")
        g(f"s_add_u32 s{S_SW + mt}, s{S_T2}, {WP - (mt & 3) * 1024}")
    g(f"s_lshl_b32 s{S_T0}, s{S_RB}, 8")
    g(f"s_lshl_b32 s{S_T1}, s{S_WV}, 16")
    g(f"s_add_u32 s{S_T0}, s{S_T0}, s{S_T1}")
    for q in range(4):
        g(f"s_add_u32 s{S_SX + q}, s{S_T0}, {X2T + q * 16384 - q * 1024}")
    g(f"s_mul_i32 s{S_MW}, s{S_WV}, 6144")
    g(f"s_lshl_b32 s{S_MX}, s{S_WV}, 12")
    g(f"s_add_u32 s{S_MX}, s{S_MX}, {XOFF}")
    vW, vX = V.alloc(1), V.alloc(1)
    g(f"v_lshlrev_b32 v{vW}, 4, v{vL}")
    g(f"v_lshrrev_b32 v{t0}, 4, v{vL}")
    g(f"v_lshlrev_b32 v{t1}, 2, v{t0}")
    g(f"v_and_b32 v{t2}, 15, v{vL}")
    g(f"v_xor_b32 v{t1}, v{t1}, v{t2}")
    g(f"v_lshlrev_b32 v{t1}, 4, v{t1}")
    g(f"v_lshl_add_u32 v{vX}, v{t0}, 12, v{t1}")
    vE = V.alloc(1)
    g(f"s_mul_i32 s{S_T0}, s{S_CB}, 6")
    g(f"s_lshl_b32 s{S_T1}, s{S_WV}, 1")
    g(f"s_add_u32 s{S_T0}, s{S_T0}, s{S_T1}")
    g(f"v_lshrrev_b32 v{t0}, 5, v{vL}")
    g(f"v_add_u32 v{t0}, s{S_T0}, v{t0}")
    g(f"v_min_u32 v{t0}, 85, v{t0}")
    g(f"v_mul_u32_u24 v{t0}, {WP_MT}, v{t0}")
    g(f"v_and_b32 v{t1}, 31, v{vL}")
    g(f"v_lshl_add_u32 v{vE}, v{t1}, 4, v{t0}")
    bA = [V.alloc(1) for _ in range(3)]
    bB = [[V.alloc(1) for _ in range(2)] for _ in range(3)]
    bE = V.alloc(1)
    g(f"v_bfe_u32 v{t0}, v{vL}, 2, 2")
    g(f"v_lshrrev_b32 v{t1}, 5, v{vL}")
    g(f"v_lshl_add_u32 v{t1}, v{t1}, 2, v{t0}")
    g(f"v_bfe_u32 v{t2}, v{vL}, 4, 1")
    g(f"v_and_b32 v{t3}, 3, v{vL}")
    g(f"v_lshlrev_b32 v{bA[0]}, 6, v{t1}")
    g(f"v_lshl_add_u32 v{bA[0]}, v{t2}, 5, v{bA[0]}")
    g(f"v_lshl_add_u32 v{bA[0]}, v{t3}, 3, v{bA[0]}")
    g(f"s_mul_i32 s{S_T0}, s{S_NH}, {3 * 512}")
    g(f"s_add_u32 s{S_T0}, s{S_T0}, {EXTB}")
    g(f"v_add_u32 v{bE}, s{S_T0}, v{bA[0]}")
    g(f"s_mul_i32 s{S_T0}, s{S_NH}, {3 * 1024}")
    g(f"v_add_u32 v{bA[0]}, s{S_T0}, v{bA[0]}")
    g(f"v_add_u32 v{bA[1]}, {SLOT}, v{bA[0]}")
    g(f"v_add_u32 v{bA[2]}, {2 * SLOT}, v{bA[0]}")
    g(f"s_lshl_b32 s{S_T0}, s{S_CH}, 1")
    g(f"v_xor_b32 v{t0}, s{S_T0}, v{t0}")
    g(f"v_lshlrev_b32 v{t0}, 6, v{t0}")
    g(f"v_lshl_add_u32 v{t0}, v{t1}, 8, v{t0}")
    g(f"v_lshl_add_u32 v{t0}, v{t2}, 5, v{t0}")
    g(f"v_lshl_add_u32 v{t0}, v{t3}, 3, v{t0}")
    g(f"v_add_u32 v{bB[0][0]}, {XOFF}, v{t0}")
    g(f"v_xor_b32 v{bB[0][1]}, 64, v{bB[0][0]}")
    for sl in (1, 2):
        for nt in range(2):
            g(f"v_add_u32 v{bB[sl][nt]}, {sl * SLOT}, v{bB[0][nt]}")

    st = dict(raw=V.alloc(8, 4), a=V.alloc(8, 2), b=V.alloc(8, 2), acc=V.alloc(16, 2), t=V.alloc(1))

    k.stamp("p3 setup")
    k.poll(CNT_B2, 16, 16)
    k.stamp("B2 done")

    def dma(c):
        sb = (c % 3) * SLOT
        tag = f"c{c}"
        out = []
        out.append(f"s_add_u32 m0, s{S_MW}, {sb}")
        for mt in range(4):
            out.append((f"buffer_load_dwordx4 v{vW}, {ws}, s{S_SW + mt} offen offset:{mt * 1024} sc1 lds", tag))
        out.append(f"s_add_u32 m0, s{S_MW}, {sb + 4096}")
        for mt in range(4, 6):
            out.append((f"buffer_load_dwordx4 v{vW}, {ws}, s{S_SW + mt} offen offset:{(mt - 4) * 1024} sc1 lds", tag))
        out.append(f"s_add_u32 m0, s{S_MX}, {sb}")
        for q in range(4):
            out.append((f"buffer_load_dwordx4 v{vX}, {ws}, s{S_SX + q} offen offset:{q * 1024} sc1 lds", tag))
        out.append(f"v_add_u32 v{vW}, 4096, v{vW}")
        out.append(f"v_add_u32 v{vX}, {64 * 4096}, v{vX}")
        return out

    def emit(x):
        if isinstance(x, tuple):
            g(x[0], tag=x[1])
        else:
            g(x)

    g(f"s_cmp_lt_u32 s{S_CB}, 15")
    with g.cond("s_cbranch_scc1"):
        stats_loads(k, st)
        stats_partials(k, st)
        g.barrier()
        stats_final(k, st)
        stats_store(k, st)
        g("s_waitcnt vmcnt(0)")
        count_up(k, CNT_BS, S_RB, t0, t1)
        g("s_branch L_p3_done")

    for x in dma(0):
        emit(x)
    g(f"s_cmp_ge_u32 s{S_WV}, 3")
    with g.cond("s_cbranch_scc1"):
        g(f"s_lshl_b32 s{S_T0}, s{S_WV}, 10")
        g(f"s_add_u32 m0, s{S_T0}, {EXTB}")
        g(f"s_mov_b32 s{S_T1}, {WP + 512 * 64}")
        g(f"buffer_load_dwordx4 v{vE}, {ws}, s{S_T1} offen sc1 lds", tag="ext")
    stats_loads(k, st)
    for c in (1, 2):
        for x in dma(c):
            emit(x)
    k.stamp("p3 issue")
    stats_partials(k, st)
    k.stamp("p3 stat")

    acc = V.alloc(96, 4)
    F = [V.alloc(20, 4), V.alloc(20, 4)]
    fa = lambda s, m: F[s] + 4 * m
    fb = lambda s, n: F[s] + 12 + 4 * n

    def reads(c, s, fs):
        sl = c % 3
        out = []
        order = [("b", 0), ("a", 0), ("b", 1), ("a", 1), ("a", 2)]
        for kind, i in order:
            for j in range(2):
                if kind == "a":
                    out.append(f"ds_read_b64_tr_b16 {vr(fa(fs, i) + 2 * j, 2)}, v{bA[sl]} offset:{s * 6144 + i * 1024 + j * 512}")
                else:
                    out.append(f"ds_read_b64_tr_b16 {vr(fb(fs, i) + 2 * j, 2)}, v{bB[sl][i]} offset:{s * 4096 + j * 2048}")
        return out

    def mfma(fs, m, n, first):
        d = vr(acc + 16 * (2 * m + n), 16)
        return f"v_mfma_f32_32x32x16_bf16 {d}, {vr(fa(fs, m), 4)}, {vr(fb(fs, n), 4)}, {'0' if first else d}"

    def kstep(fs, first, rd, extra):
        ri, ei = 0, 0
        for idx, (m, n) in enumerate([(0, 0), (0, 1), (1, 0), (1, 1), (2, 0), (2, 1)]):
            g(mfma(fs, m, n, first))
            for _ in range(2):
                if ri < len(rd):
                    g(rd[ri]); ri += 1
            want = (len(extra) * (idx + 1) + 5) // 6
            while ei < min(want, len(extra)):
                emit(extra[ei]); ei += 1
        while ri < len(rd):
            g(rd[ri]); ri += 1

    g.wait_tag("c0")
    g.wait_tag("ext")
    g.barrier()
    k.stamp("c0 landed")
    for x in reads(0, 0, 0):
        g(x)
    pend = []
    fills = {}
    with g.capture() as sf:
        stats_final(k, st)
    fills[0] = sf[:len(sf) // 2]
    fills[1] = sf[len(sf) // 2:]
    vPoll = V.alloc(1)
    vLs = V.alloc(4, 2)
    for step in range(32):
        c, s = divmod(step, 4)
        fs = step & 1
        last_in_chunk = s == 3
        if step == 31:
            rd = [f"ds_read_b64_tr_b16 {vr(fa(fs ^ 1, m), 2)}, v{bE} offset:{m * 512}" for m in range(3)]
        elif last_in_chunk:
            g("s_waitcnt lgkmcnt(0)")
            g.wait_tag(f"c{c + 1}")
            g("s_barrier")
            if c + 3 < 8:
                pend = dma(c + 3)
            rd = reads(c + 1, 0, fs ^ 1)
        else:
            rd = reads(c, s + 1, fs ^ 1)
        n_take = (len(pend) + (3 - ((step + 1) % 4))) // (4 - ((step + 1) % 4)) if pend else 0
        extra, pend = pend[:n_take], pend[n_take:]
        with g.capture() as seg:
            kstep(fs, step == 0, rd, extra)
        if step in fills:
            seg = Gen.interleave(seg, fills[step], key=lambda i: i.cls == "mfma")
        g.extend(seg)
        if step == 1:
            stats_store(k, st)
        if step == 11:
            g(f"s_cmp_lg_u32 s{S_WV}, 0")
            with g.cond("s_cbranch_scc1"):
                g.wait_tag("ln2st")
            count_up(k, CNT_BS, S_RB, t0, t1)
        if step == 19:
            g(f"s_lshl_b32 s{S_T0}, s{S_RB}, 8")
            g(f"s_add_u32 s{S_T0}, s{S_T0}, {CNT_BS}")
            g(f"v_mov_b32 v{t2}, s{S_T0}")
            g(f"buffer_load_dword v{vPoll}, v{t2}, {ws}, 0 offen sc1")
        if step == 23:
            lab, done = g.newlabel("Lbs"), g.newlabel("Lbsd")
            g(f"v_cmp_gt_u32 vcc, 16, v{vPoll}")
            with g.cond("s_cbranch_vccz"):
                g(f"s_mov_b32 s{S_SPIN}, 0")
                g.label(lab)
                g(f"buffer_load_dword v{vPoll}, v{t2}, {ws}, 0 offen sc1")
                g(f"s_add_u32 s{S_SPIN}, s{S_SPIN}, 1")
                g(f"s_waitcnt vmcnt(0)")
                g(f"v_cmp_gt_u32 vcc, 16, v{vPoll}")
                g(f"s_cmp_gt_u32 s{S_SPIN}, 0x40000")
                g(f"s_cbranch_scc1 {done}")
                g(f"s_cbranch_vccnz {lab}")
                g.label(done)
            g(f"s_lshl_b32 s{S_T0}, s{S_RB}, 10")
            g(f"s_lshl_b32 s{S_T1}, s{S_CH}, 9")
            g(f"s_add_u32 s{S_T0}, s{S_T0}, s{S_T1}")
            g(f"s_add_u32 s{S_T0}, s{S_T0}, {LN2S}")
            g(f"v_and_b32 v{t3}, 31, v{vL}")
            g(f"v_lshlrev_b32 v{t3}, 3, v{t3}")
            for nt in range(2):
                g(f"buffer_load_dwordx2 {vr(vLs + 2 * nt, 2)}, v{t3}, {ws}, s{S_T0} offen offset:{256 * nt} sc1")
        if step % 4 == 3:
            k.stamp(f"chunk{c}")
    V.release(vPoll)

    fs = 0
    for m in range(3):
        g(f"v_mov_b32 v{fa(fs, m) + 2}, 0")
        g(f"v_mov_b32 v{fa(fs, m) + 3}, 0")
    kc = V.alloc(8, 2)
    for n in range(2):
        g(f"v_mov_b32 v{fb(fs, n)}, v{vLs + 2 * n}")
        g(f"v_mov_b32 v{fb(fs, n) + 1}, v{vLs + 2 * n + 1}")
        g(f"v_mov_b32 v{fb(fs, n) + 2}, 0")
        g(f"v_mov_b32 v{fb(fs, n) + 3}, 0")
    for m in range(3):
        for n in range(2):
            g(mfma(fs, m, n, False))
    for n in range(2):
        c = kc + 4 * n
        g(f"v_lshlrev_b32 v{c + 2}, 16, v{vLs + 2 * n + 1}")
        g(f"v_rcp_f32 v{c + 3}, v{c + 2}")
        g(f"v_mul_f32 v{c + 2}, v{c + 2}, v{c + 2}")
        g(f"v_mul_f32 v{c}, {fl(C1G)}, v{c + 3}")
        g(f"v_mul_f32 v{c + 1}, v{c + 3}, v{c + 3}")
        g(f"v_mul_f32 v{c + 1}, v{c + 1}, v{c + 3}")
        g(f"v_mul_f32 v{c + 1}, {fl(C2G)}, v{c + 1}")
    k.stamp("ext")

    T8 = V.alloc(8, 2)
    P8 = V.alloc(8, 2)
    O = [V.alloc(4, 4), V.alloc(4, 4)]
    vO = V.alloc(1)
    g(f"v_lshlrev_b32 v{vO}, 4, v{vL}")
    g(f"s_lshl_b32 s{S_T0}, s{S_RB}, 2")
    g(f"s_lshl_b32 s{S_T1}, s{S_CH}, 1")
    g(f"s_add_u32 s{S_T0}, s{S_T0}, s{S_T1}")
    g(f"s_mul_i32 s{S_T0}, s{S_T0}, {ACT_LT}")
    g(f"s_mul_i32 s{S_T2}, s{S_CB}, 6")
    g(f"s_mul_i32 s{S_T1}, s{S_NH}, 3")
    g(f"s_add_u32 s{S_T2}, s{S_T2}, s{S_T1}")
    g(f"s_lshl_b32 s{S_T1}, s{S_T2}, 10")
    g(f"s_add_u32 s{S_T0}, s{S_T0}, s{S_T1}")
    g(f"s_add_u32 s{S_T0}, s{S_T0}, {ACT}")
    g(f"s_add_u32 s{S_T1}, s{S_T0}, {ACT_LT}")
    n_o = 0
    for m in range(3):
        for n in range(2):
            a = acc + 16 * (2 * m + n)
            c = kc + 4 * n
            for e in range(0, 8, 2):
                g(f"v_pk_mul_f32 {vr(T8 + e, 2)}, {vr(a + e, 2)}, {vr(a + e, 2)}")
            for e in range(0, 8, 2):
                g(f"v_pk_fma_f32 {vr(T8 + e, 2)}, {vr(T8 + e, 2)}, {vr(c, 2)}, {vr(c, 2)} op_sel:[0,1,0] op_sel_hi:[1,1,0]")
            for e in range(0, 8, 2):
                g(f"v_pk_mul_f32 {vr(T8 + e, 2)}, {vr(T8 + e, 2)}, {vr(a + e, 2)}")
            for e in range(8):
                g(f"v_exp_f32 v{T8 + e}, v{T8 + e}")
            for e in range(0, 8, 2):
                g(f"v_pk_mul_f32 {vr(P8 + e, 2)}, {vr(a + e, 2)}, {vr(a + 8 + e, 2)}")
            for e in range(0, 8, 2):
                g(f"v_pk_fma_f32 {vr(T8 + e, 2)}, {vr(T8 + e, 2)}, {vr(c + 2, 2)}, {vr(c + 2, 2)} op_sel_hi:[1,0,0]")
            for e in range(8):
                g(f"v_rcp_f32 v{T8 + e}, v{T8 + e}")
            for e in range(0, 8, 2):
                g(f"v_pk_mul_f32 {vr(P8 + e, 2)}, {vr(P8 + e, 2)}, {vr(T8 + e, 2)}")
            o = O[n_o & 1]
            n_o += 1
            for q in range(4):
                g(f"v_cvt_pk_bf16_f32 v{o + q}, v{P8 + 2 * q}, v{P8 + 2 * q + 1}")
            g(f"s_add_u32 s{S_T3}, s{S_T2}, {m}")
            g(f"s_cmp_ge_u32 s{S_T3}, 86")
            with g.cond("s_cbranch_scc1"):
                g(f"buffer_store_dwordx4 {vr(o, 4)}, v{vO}, {ws}, s{S_T0 + n} offen offset:{1024 * m} sc1")
    k.stamp("geglu")
    k.arrive(CNT_B3, S_RB)
    k.stamp("arrive3")
    V.release(T8, 8); V.release(P8, 8); V.release(O[0], 4); V.release(O[1], 4); V.release(vO)
    V.release(kc, 8); V.release(vLs, 4); V.release(acc, 96); V.release(F[0], 20); V.release(F[1], 20)
    g.label("L_p3_done")
    g("s_waitcnt vmcnt(0) lgkmcnt(0)")
    for r in [vW, vX, vE, bE] + bA + [x for y in bB for x in y]:
        V.release(r)
    V.release(st["raw"], 8); V.release(st["a"], 8); V.release(st["b"], 8); V.release(st["acc"], 16); V.release(st["t"])
```

```python
from gen import *

S_LB, S_DB = 78, 79
S_KS0 = 80
RED = 0
RES = 49152
NKS = 22


def phase4(k):
    g, V, A = k.g, k.V, k.A
    vL = k.vLane
    t0, t1, t2, t3 = k.p1["T"]
    ws = sr(R_WS, 4)
    g(f"s_lshl_b32 s{S_T0}, s{S_X}, 2")
    g(f"s_lshr_b32 s{S_T1}, s{S_J}, 3")
    g(f"s_add_u32 s{S_LB}, s{S_T0}, s{S_T1}")
    g(f"s_and_b32 s{S_DB}, s{S_J}, 7")
    g(f"s_mul_i32 s{S_KS0}, s{S_WV}, {NKS}")
    vO = V.alloc(1)
    g(f"v_lshlrev_b32 v{vO}, 4, v{vL}")

    wd = A.alloc(8 * NKS, 4)
    g(f"s_mul_i32 s{S_T0}, s{S_DB}, {WDF_DB}")
    g(f"s_lshl_b32 s{S_T1}, s{S_KS0}, 11")
    g(f"s_add_u32 s{S_T0}, s{S_T0}, s{S_T1}")
    g(f"s_add_u32 s{S_T0}, s{S_T0}, {WDF}")
    g(f"s_lshl_b32 s{S_T1}, s{S_CH}, 10")
    v0a, v1a = V.alloc(1), V.alloc(1)
    g(f"v_add_u32 v{v0a}, s{S_T1}, v{vO}")
    g(f"v_xor_b32 v{v1a}, 1024, v{v0a}")

    def wd_loads(lo, hi):
        for i in range(lo, hi):
            off = (i & 1) * 2048
            g(f"buffer_load_dwordx4 {ar(wd + 8 * i, 4)}, v{v0a}, {ws}, s{S_T0} offen offset:{off} sc1")
            g(f"buffer_load_dwordx4 {ar(wd + 8 * i + 4, 4)}, v{v1a}, {ws}, s{S_T0} offen offset:{off} sc1")
            if i & 1:
                g(f"s_add_u32 s{S_T0}, s{S_T0}, 4096")

    wd_loads(0, NKS - 2)
    g(f"s_cmp_eq_u32 s{S_WV}, 3")
    with g.cond("s_cbranch_scc1"):
        wd_loads(NKS - 2, NKS)

    g(f"s_lshl_b32 s{S_T0}, s{S_DB}, 6")
    g(f"s_lshl_b32 s{S_T1}, s{S_CH}, 5")
    g(f"s_add_u32 s{S_T0}, s{S_T0}, s{S_T1}")
    g(f"s_lshl_b32 s{S_T2}, s{S_T0}, 2")
    g(f"s_lshl_b32 s{S_T0}, s{S_T0}, 12")
    g(f"s_lshl_b32 s{S_T1}, s{S_LB}, 7")
    g(f"s_add_u32 s{S_T0}, s{S_T0}, s{S_T1}")
    g(f"s_lshl_b32 s{S_T1}, s{S_NH}, 6")
    g(f"s_add_u32 s{S_T0}, s{S_T0}, s{S_T1}")
    g(f"s_add_u32 s{S_T0}, s{S_T0}, {X2T}")
    g(f"v_lshrrev_b32 v{t0}, 2, v{vL}")
    g(f"v_and_b32 v{t1}, 3, v{vL}")
    g(f"v_lshlrev_b32 v{t1}, 4, v{t1}")
    g(f"v_lshl_add_u32 v{t0}, v{t0}, 12, v{t1}")
    g(f"s_lshl_b32 s{S_T1}, s{S_WV}, 11")
    g(f"s_add_u32 m0, s{S_T1}, {RES}")
    g(f"s_add_u32 s{S_T3}, s{S_T0}, {16 * 4096 - 1024}")
    g(f"buffer_load_dwordx4 v{t0}, {ws}, s{S_T0} offen sc1 lds", tag="res")
    g(f"buffer_load_dwordx4 v{t0}, {ws}, s{S_T3} offen offset:1024 sc1 lds", tag="res")
    gb = V.alloc(16, 4)
    g(f"v_lshrrev_b32 v{t1}, 5, v{vL}")
    g(f"v_lshlrev_b32 v{t1}, 4, v{t1}")
    g(f"s_add_u32 s{S_T2}, s{S_T2}, {MOD + 5 * 2048}")
    for q in range(4):
        g(f"buffer_load_dwordx4 {vr(gb + 4 * q, 4)}, v{t1}, {ws}, s{S_T2} offen offset:{32 * q} sc1")
    k.stamp("p4 pre")

    g(f"s_lshr_b32 s{S_T5}, s{S_LB}, 1")
    k.poll(CNT_B3, 1, 15, S_T5)
    k.stamp("B3 done")

    nA = (256 - A.hi) // 4 if False else 0
    free_a = 256 - (wd + 8 * NKS)
    n_in_a = free_a // 4
    actA = A.alloc(4 * n_in_a, 4)
    n_in_v = 2 * NKS - n_in_a
    actV = V.alloc(4 * n_in_v, 4)

    def act_reg(i, n):
        idx = 2 * i + n
        return vr(actV + 4 * idx, 4) if idx < n_in_v else ar(actA + 4 * (idx - n_in_v), 4)

    g(f"s_lshl_b32 s{S_T0}, s{S_LB}, 1")
    g(f"s_add_u32 s{S_T1}, s{S_T0}, s{S_NH}")
    g(f"s_xor_b32 s{S_T2}, s{S_T1}, 1")
    g(f"s_lshl_b32 s{S_T3}, s{S_KS0}, 10")
    g(f"s_add_u32 s{S_T3}, s{S_T3}, {ACT}")
    g(f"s_mul_i32 s{S_T1}, s{S_T1}, {ACT_LT}")
    g(f"s_mul_i32 s{S_T2}, s{S_T2}, {ACT_LT}")
    g(f"s_add_u32 s{S_T1}, s{S_T1}, s{S_T3}")
    g(f"s_add_u32 s{S_T2}, s{S_T2}, s{S_T3}")

    def act_loads(lo, hi):
        for i in range(lo, hi):
            off = (i & 3) * 1024
            g(f"buffer_load_dwordx4 {act_reg(i, 0)}, v{vO}, {ws}, s{S_T1} offen offset:{off} sc1")
            g(f"buffer_load_dwordx4 {act_reg(i, 1)}, v{vO}, {ws}, s{S_T2} offen offset:{off} sc1")
            if (i & 3) == 3:
                g(f"s_add_u32 s{S_T1}, s{S_T1}, 4096")
                g(f"s_add_u32 s{S_T2}, s{S_T2}, 4096")

    act_loads(0, NKS - 2)
    g(f"s_cmp_eq_u32 s{S_WV}, 3")
    with g.cond("s_cbranch_scc1"):
        act_loads(NKS - 2, NKS)
    k.stamp("p4 issue")

    acc = V.alloc(64, 4)

    def mfmas(i):
        for m in range(2):
            for n in range(2):
                d = vr(acc + 16 * (2 * m + n), 16)
                g(f"v_mfma_f32_32x32x16_bf16 {d}, {ar(wd + 8 * i + 4 * m, 4)}, {act_reg(i, n)}, {'0' if i == 0 else d}")

    for i in range(NKS - 2):
        mfmas(i)
    g(f"s_cmp_eq_u32 s{S_WV}, 3")
    with g.cond("s_cbranch_scc1"):
        for i in range(NKS - 2, NKS):
            mfmas(i)
    k.stamp("p4 mfma")
    A.release(wd, 8 * NKS); A.release(actA, 4 * n_in_a); V.release(actV, 4 * n_in_v)

    for t in range(1, 4):
        g(f"s_xor_b32 s{S_T0}, s{S_WV}, {t}")
        g(f"s_mul_i32 s{S_T0}, s{S_T0}, {3 * 4096}")
        g(f"s_add_u32 s{S_T0}, s{S_T0}, {RED + (t - 1) * 4096}")
        g(f"v_add_u32 v{t0}, s{S_T0}, v{vO}")
        for q in range(4):
            g(f"ds_write_b128 v{t0}, {vr(acc + 16 * t + 4 * q, 4)} offset:{1024 * q}")
    x2 = V.alloc(8, 2)
    g(f"v_bfe_u32 v{t1}, v{vL}, 2, 2")
    g(f"v_lshrrev_b32 v{t2}, 5, v{vL}")
    g(f"v_lshl_add_u32 v{t1}, v{t2}, 2, v{t1}")
    g(f"v_lshlrev_b32 v{t1}, 6, v{t1}")
    g(f"v_bfe_u32 v{t2}, v{vL}, 4, 1")
    g(f"v_lshl_add_u32 v{t1}, v{t2}, 5, v{t1}")
    g(f"v_and_b32 v{t2}, 3, v{vL}")
    g(f"v_lshl_add_u32 v{t1}, v{t2}, 3, v{t1}")
    g(f"s_lshl_b32 s{S_T0}, s{S_WV}, 11")
    g(f"s_add_u32 s{S_T0}, s{S_T0}, {RES}")
    g(f"v_add_u32 v{t1}, s{S_T0}, v{t1}")
    g.wait_tag("res")
    for q in range(4):
        g(f"ds_read_b64_tr_b16 {vr(x2 + 2 * q, 2)}, v{t1} offset:{512 * q}")
    g.barrier()
    part = V.alloc(48, 4)
    g(f"s_mul_i32 s{S_T0}, s{S_WV}, {3 * 4096}")
    g(f"s_add_u32 s{S_T0}, s{S_T0}, {RED}")
    g(f"v_add_u32 v{t0}, s{S_T0}, v{vO}")
    for t in range(3):
        for q in range(4):
            g(f"ds_read_b128 {vr(part + 16 * t + 4 * q, 4)}, v{t0} offset:{4096 * t + 1024 * q}")
    xf = V.alloc(16, 4)
    for q in range(8):
        g(f"v_lshlrev_b32 v{xf + 2 * q}, 16, v{x2 + q}")
        g(f"v_and_b32 v{xf + 2 * q + 1}, 0xffff0000, v{x2 + q}")
    for t in range(3):
        for i in range(0, 16, 2):
            g(f"v_pk_add_f32 {vr(acc + i, 2)}, {vr(acc + i, 2)}, {vr(part + 16 * t + i, 2)}")
    for i in range(0, 16, 2):
        g(f"v_pk_fma_f32 {vr(xf + i, 2)}, {vr(acc + i, 2)}, {vr(gb + i, 2)}, {vr(xf + i, 2)}")
    P = V.alloc(8, 4)
    for q in range(8):
        g(f"v_cvt_pk_bf16_f32 v{P + q}, v{xf + 2 * q}, v{xf + 2 * q + 1}")
    g(f"v_and_b32 v{t0}, 31, v{vL}")
    g(f"v_lshlrev_b32 v{t0}, 10, v{t0}")
    g(f"v_lshrrev_b32 v{t1}, 5, v{vL}")
    g(f"v_lshl_add_u32 v{t0}, v{t1}, 4, v{t0}")
    g(f"s_lshl_b32 s{S_T0}, s{S_LB}, 16")
    g(f"s_lshl_b32 s{S_T1}, s{S_NH}, 15")
    g(f"s_add_u32 s{S_T0}, s{S_T0}, s{S_T1}")
    g(f"s_lshl_b32 s{S_T1}, s{S_DB}, 7")
    g(f"s_add_u32 s{S_T0}, s{S_T0}, s{S_T1}")
    g(f"s_lshl_b32 s{S_T1}, s{S_CH}, 6")
    g(f"s_add_u32 s{S_T0}, s{S_T0}, s{S_T1}")
    for p in range(2):
        g(f"v_permlane32_swap_b32 v{P + 4 * p}, v{P + 4 * p + 2}")
        g(f"v_permlane32_swap_b32 v{P + 4 * p + 1}, v{P + 4 * p + 3}")
    for p in range(2):
        g(f"buffer_store_dwordx4 {vr(P + 4 * p, 4)}, v{t0}, {sr(R_OUT, 4)}, s{S_T0} offen offset:{32 * p}")
    k.stamp("p4 end")
```

```python
import sys, math, struct
from asmdsl import Gen

KNAME = "adaLN_cond__ssm_conv_s4d__geglu_ffn__prompt_kernel"

CNT_B1, CNT_B2, CNT_B3, CNT_BS = 0x0000, 0x1000, 0x2000, 0x3000
STATS = 0x10000
MOD = 0x20000
LN2S = 0x30000
X2T = 0x100000
UP = 0x300000
WP = 0x500000
WP_MT = 520 * 64
WDF = 0x800000
WDF_DB = 86 * 2048
ACT = 0xA00000
ACT_LT = 86 * 1024
DBGWS = 0x1000000
WS_SIZE = 0x4000000

KC, KC_CH = 0, 2624
KT, KT_COPY, KT_CH = 8192, 4160, 16640
HB, HB_CH = 41472, 4608
BASE, BASE_CH = 50688, 8192
KX = 67072
PARAM = 83456
WDS = 87552
UTS = 95744
MISC = 103936
LDS_BYTES = 131072

LOG2E = 1.4426950408889634


def f2u(x):
    return struct.unpack("<I", struct.pack("<f", x))[0]


def hx(x):
    return "0x%08x" % (x & 0xFFFFFFFF)


def fl(x):
    return hx(f2u(x))


class VAlloc:
    def __init__(self, n=256, kind="v"):
        self.free = [True] * n
        self.kind = kind
        self.hi = 0

    def alloc(self, n=1, align=1):
        if n >= 2:
            align = max(align, 2)
        for s in range(0, len(self.free) - n + 1, align):
            if all(self.free[s:s + n]):
                for i in range(s, s + n):
                    self.free[i] = False
                self.hi = max(self.hi, s + n)
                return s
        raise RuntimeError("out of registers")

    def release(self, s, n=1):
        for i in range(s, s + n):
            assert not self.free[i], f"double free {self.kind}{i}"
            self.free[i] = True


def vr(s, n=1):
    return f"v{s}" if n == 1 else f"v[{s}:{s + n - 1}]"


def ar(s, n=1):
    return f"a{s}" if n == 1 else f"a[{s}:{s + n - 1}]"


def sr(s, n=1):
    return f"s{s}" if n == 1 else f"s[{s}:{s + n - 1}]"


P_U, P_LOGA, P_AIM, P_CRE, P_CIM, P_LDT, P_DSK = 16, 18, 20, 22, 24, 26, 28
P_WG, P_WU, P_WD, P_C, P_WM, P_OUT, P_DBG, P_WS = 32, 34, 36, 38, 40, 42, 44, 46
R_WS, R_U, R_WM, R_WD, R_OUT, R_DBG = 48, 52, 56, 60, 64, 68
S_WV, S_X, S_J, S_D0, S_CH, S_NH = 72, 73, 74, 75, 76, 77
S_LDT, S_DSK = 78, 79
S_T0, S_T1, S_T2, S_T3, S_T4, S_T5 = 4, 5, 6, 7, 8, 9
S_EX = 10
S_EX2 = 12
S_PC = 14
S_MT, S_DH, S_WACT = 80, 81, 82
S_CSC = 83
S_K8192, S_K6144, S_K12288, S_K18432 = 84, 85, 86, 87
S_SPIN = 88
S_M0, S_M1 = 90, 92
S_KK = 89


class Kern:
    def __init__(self, stop_after=99, dumps=False, stamps=False):
        self.g = Gen()
        self.V = VAlloc(256, "v")
        self.A = VAlloc(256, "a")
        self.stop_after = stop_after
        self.dumps = dumps
        self.stamps = stamps
        self.nstamp = 0
        self.stamp_names = []

    def srd(self, r, p, size):
        g = self.g
        g(f"s_mov_b32 s{r}, s{p}")
        g(f"s_and_b32 s{r + 1}, s{p + 1}, 0xffff")
        g(f"s_mov_b32 s{r + 2}, {hx(size)}")
        g(f"s_mov_b32 s{r + 3}, 0x00020000")

    def stamp(self, name=""):
        if not self.stamps:
            return
        g = self.g
        i = self.nstamp
        self.nstamp += 1
        self.stamp_names.append(name)
        if i == 0:
            self.vStamp = self.V.alloc(1)
        g("s_memrealtime s[94:95]")
        g("s_waitcnt lgkmcnt(0)")
        g(f"v_writelane_b32 v{self.vStamp}, s94, {i}")

    def stamp_flush(self):
        if not self.stamps:
            return
        g, V = self.g, self.V
        a = V.alloc(1)
        g(f"s_lshl_b32 s96, s2, 2")
        g(f"s_add_u32 s96, s96, s{S_WV}")
        g(f"s_lshl_b32 s96, s96, 8")
        g(f"s_add_u32 s96, s96, {hx(DBGWS + 0xC00000)}")
        g(f"v_lshl_add_u32 v{a}, v{self.vLane}, 2, s96")
        g(f"buffer_store_dword v{self.vStamp}, v{a}, {sr(R_WS, 4)}, 0 offen")
        V.release(a)

    def dump(self, regs, n, off, per_thread_stride=None):
        if not self.dumps:
            return
        g, V = self.g, self.V
        a = V.alloc(1)
        g(f"s_mul_i32 s96, s2, {256 * n * 4}")
        g(f"s_add_u32 s96, s96, {hx(DBGWS + off)}")
        g(f"v_mul_u32_u24 v{a}, {n * 4}, v{self.vTid}")
        g(f"v_add_u32 v{a}, s96, v{a}")
        for i in range(n):
            g(f"buffer_store_dword v{regs + i}, v{a}, {sr(R_WS, 4)}, 0 offen offset:{4 * i}")
        g("s_waitcnt vmcnt(0)")
        V.release(a)

    def bf16_round(self, dst, src, tmp=None):
        g = self.g
        g(f"v_cvt_pk_bf16_f32 v{dst}, v{src}, v{src}")
        g(f"v_lshlrev_b32 v{dst}, 16, v{dst}")

    def wave_reduce(self, op, regs):
        g = self.g
        steps = ["row_shr:1 row_mask:0xf bank_mask:0xf", "row_shr:2 row_mask:0xf bank_mask:0xf",
                 "row_shr:4 row_mask:0xf bank_mask:0xf", "row_shr:8 row_mask:0xf bank_mask:0xf",
                 "row_bcast:15 row_mask:0xa bank_mask:0xf", "row_bcast:31 row_mask:0xc bank_mask:0xf"]
        for st in steps:
            for r in regs:
                g(f"v_{op}_f32_dpp v{r}, v{r}, v{r} {st}")

    def arrive(self, cnt_soff_sgpr_or_imm, shard_sgpr):
        g, V = self.g, self.V
        g("s_waitcnt vmcnt(0)")
        g.barrier()
        a, one = V.alloc(1), V.alloc(1)
        g(f"s_cmp_lg_u32 s{S_WV}, 0")
        with g.cond("s_cbranch_scc1"):
            g(f"s_lshl_b32 s{S_T0}, s{shard_sgpr}, 8")
            g(f"s_add_u32 s{S_T0}, s{S_T0}, {hx(cnt_soff_sgpr_or_imm)}")
            g(f"v_mov_b32 v{a}, s{S_T0}")
            g(f"v_mov_b32 v{one}, 1")
            g(f"s_mov_b64 {sr(S_EX, 2)}, exec")
            g(f"s_mov_b64 exec, 1")
            g(f"buffer_atomic_add v{one}, v{a}, {sr(R_WS, 4)}, 0 offen sc1")
            g(f"s_mov_b64 exec, {sr(S_EX, 2)}")
        V.release(a)
        V.release(one)

    def poll(self, cnt, nshard, target, shard_sgpr=None):
        g, V = self.g, self.V
        a, d = V.alloc(1), V.alloc(1)
        lab = g.newlabel("Lpoll")
        done = g.newlabel("Lpolld")
        g(f"s_cmp_lg_u32 s{S_WV}, 0")
        with g.cond("s_cbranch_scc1"):
            if nshard == 1:
                g(f"s_lshl_b32 s{S_T0}, s{shard_sgpr}, 8")
                g(f"s_add_u32 s{S_T0}, s{S_T0}, {hx(cnt)}")
                g(f"v_mov_b32 v{a}, s{S_T0}")
            else:
                g(f"v_and_b32 v{a}, 15, v{self.vLane}")
                g(f"v_lshlrev_b32 v{a}, 8, v{a}")
                g(f"v_add_u32 v{a}, {hx(cnt)}, v{a}")
            g(f"s_mov_b32 s{S_SPIN}, 0")
            g.label(lab)
            g(f"buffer_load_dword v{d}, v{a}, {sr(R_WS, 4)}, 0 offen sc1")
            g(f"s_add_u32 s{S_SPIN}, s{S_SPIN}, 1")
            g(f"s_waitcnt vmcnt(0)")
            g(f"v_cmp_gt_u32 vcc, {target}, v{d}")
            g(f"s_cmp_gt_u32 s{S_SPIN}, 0x40000")
            g(f"s_cbranch_scc1 {done}")
            g(f"s_cbranch_vccnz {lab}")
            g.label(done)
        g.barrier()
        V.release(a)
        V.release(d)

    def entry(self):
        g, V = self.g, self.V
        g("s_cmp_ge_u32 s2, 256")
        g("s_cbranch_scc1 L_end")
        self.vTid = 0
        V.free[0] = False
        if self.stamps:
            self.stamp("t0")
        g("s_load_dwordx16 s[16:31], s[0:1], 0")
        g("s_load_dwordx16 s[32:47], s[0:1], 64")
        g(f"s_getpc_b64 {sr(S_PC, 2)}")
        g.label("L_pc")
        g(f"s_sub_u32 s{S_PC}, s{S_PC}, L_pc-{KNAME}")
        g(f"s_subb_u32 s{S_PC + 1}, s{S_PC + 1}, 0")
        self.vLane = V.alloc(1)
        g(f"v_and_b32 v{self.vLane}, 63, v0")
        t = V.alloc(1)
        g(f"v_lshrrev_b32 v{t}, 6, v0")
        g(f"s_and_b32 s{S_X}, s2, 7")
        g(f"s_lshr_b32 s{S_J}, s2, 3")
        g(f"v_readfirstlane_b32 s{S_WV}, v{t}")
        V.release(t)
        g(f"s_lshl_b32 s{S_D0}, s{S_X}, 6")
        g(f"s_lshl_b32 s{S_T0}, s{S_J}, 1")
        g(f"s_add_u32 s{S_D0}, s{S_D0}, s{S_T0}")
        g(f"s_lshr_b32 s{S_CH}, s{S_WV}, 1")
        g(f"s_and_b32 s{S_NH}, s{S_WV}, 1")
        g(f"s_mov_b32 s{S_K8192}, 8192")
        g(f"s_mov_b32 s{S_K6144}, 6144")
        g(f"s_mov_b32 s{S_K12288}, 12288")
        g(f"s_mov_b32 s{S_K18432}, 18432")

    def entry_srds(self):
        g = self.g
        g("s_waitcnt lgkmcnt(0)")
        self.srd(R_WS, P_WS, WS_SIZE)
        self.srd(R_U, P_U, 2048 * 1024)
        self.srd(R_WM, P_WM, 512 * 6144)
        self.srd(R_WD, P_WD, 1376 * 1024)
        self.srd(R_OUT, P_OUT, 2048 * 1024)
        self.srd(R_DBG, P_DBG, 256)

    def phase1(self):
        g, V = self.g, self.V
        vL, vT = self.vLane, self.vTid
        tb = V.alloc(4, 2)
        t0, t1, t2, t3 = T = [tb, tb + 1, tb + 2, tb + 3]

        oPar, oRow, oUt, oUt1, oWm, oC = [V.alloc(1) for _ in range(6)]
        g(f"s_add_u32 s{S_T0}, s{S_D0}, s{S_CH}")
        g(f"s_lshl_b32 s{S_T0}, s{S_T0}, 8")
        g(f"s_lshl_b32 s{S_T1}, s{S_NH}, 7")
        g(f"s_add_u32 s{S_T0}, s{S_T0}, s{S_T1}")
        g(f"v_lshl_add_u32 v{oPar}, v{vL}, 1, s{S_T0}")
        g(f"v_lshlrev_b32 v{oRow}, 4, v{vL}")
        g(f"s_lshl_b32 s{S_T0}, s{S_J}, 6")
        g(f"s_lshl_b32 s{S_T1}, s{S_WV}, 4")
        g(f"s_add_u32 s{S_T0}, s{S_T0}, s{S_T1}")
        g(f"s_lshl_b32 s{S_T0}, s{S_T0}, 10")
        g(f"s_lshl_b32 s{S_T1}, s{S_X}, 7")
        g(f"s_add_u32 s{S_T0}, s{S_T0}, s{S_T1}")
        g(f"v_lshrrev_b32 v{t0}, 5, v{vL}")
        g(f"v_lshlrev_b32 v{t0}, 1, v{t0}")
        g(f"v_and_b32 v{t1}, 7, v{vL}")
        g(f"v_xor_b32 v{t0}, v{t0}, v{t1}")
        g(f"v_lshrrev_b32 v{t1}, 3, v{vL}")
        g(f"v_lshlrev_b32 v{t1}, 10, v{t1}")
        g(f"v_lshl_add_u32 v{t0}, v{t0}, 4, v{t1}")
        g(f"v_add_u32 v{oUt}, s{S_T0}, v{t0}")
        g(f"v_xor_b32 v{oUt1}, 64, v{oUt}")
        g(f"v_lshrrev_b32 v{t0}, 1, v{vL}")
        g(f"v_lshl_add_u32 v{t0}, s{S_WV}, 5, v{t0}")
        g(f"v_lshlrev_b32 v{oC}, 3, v{t0}")
        g(f"v_mul_u32_u24 v{t0}, 24576, v{t0}")
        g(f"v_and_b32 v{t1}, 1, v{vL}")
        g(f"v_lshl_add_u32 v{t0}, v{t1}, 4, v{t0}")
        g(f"s_mul_i32 s{S_T0}, s{S_X}, 24")
        g(f"s_add_u32 s{S_T0}, s{S_T0}, s{S_J}")
        g(f"s_lshl_b32 s{S_T0}, s{S_T0}, 5")
        g(f"v_add_u32 v{oWm}, s{S_T0}, v{t0}")
        self.entry_srds()
        self.stamp("args")

        g("s_cmp_lg_u32 s2, 0")
        with g.cond("s_cbranch_scc1"):
            g(f"v_lshlrev_b32 v{t0}, 8, v{vL}")
            g(f"v_mov_b32 v{t1}, 0")
            g(f"buffer_store_dword v{t1}, v{t0}, {sr(R_WS, 4)}, 0 offen sc1", tag="zero")

        wm = V.alloc(16, 4)
        cv = V.alloc(2)
        g(f"s_cmp_ge_u32 s{S_J}, 24")
        with g.cond("s_cbranch_scc1"):
            g(f"global_load_dwordx2 {vr(cv, 2)}, v{oC}, {sr(P_C, 2)}")
            g(f"buffer_load_dwordx4 {vr(wm, 4)}, v{oWm}, {sr(R_WM, 4)}, 0 offen")
            g(f"buffer_load_dwordx4 {vr(wm + 4, 4)}, v{oWm}, {sr(R_WM, 4)}, s{S_K6144} offen")
            g(f"buffer_load_dwordx4 {vr(wm + 8, 4)}, v{oWm}, {sr(R_WM, 4)}, s{S_K12288} offen")
            g(f"buffer_load_dwordx4 {vr(wm + 12, 4)}, v{oWm}, {sr(R_WM, 4)}, s{S_K18432} offen")
        row = V.alloc(8, 4)
        g(f"s_lshl_b32 s{S_T0}, s2, 2")
        g(f"s_add_u32 s{S_T0}, s{S_T0}, s{S_WV}")
        g(f"s_lshl_b32 s{S_T0}, s{S_T0}, 11")
        g(f"buffer_load_dwordx4 {vr(row, 4)}, v{oRow}, {sr(R_U, 4)}, s{S_T0} offen")
        g(f"buffer_load_dwordx4 {vr(row + 4, 4)}, v{oRow}, {sr(R_U, 4)}, s{S_T0} offen offset:1024")
        g(f"s_lshl_b32 s{S_T1}, s{S_WV}, 11")
        g(f"s_add_u32 m0, s{S_T1}, {UTS}")
        g(f"s_add_u32 s{S_T2}, s{S_K8192}, {-1024 & 0xffffffff:#x}")
        g(f"buffer_load_dwordx4 v{oUt}, {sr(R_U, 4)}, 0 offen lds", tag="ut")
        g(f"buffer_load_dwordx4 v{oUt1}, {sr(R_U, 4)}, s{S_T2} offen offset:1024 lds", tag="ut")
        pLA, pAI, pCR, pCI = [V.alloc(1) for _ in range(4)]
        g(f"global_load_ushort v{pLA}, v{oPar}, {sr(P_LOGA, 2)}")
        g(f"global_load_ushort v{pAI}, v{oPar}, {sr(P_AIM, 2)}")
        g(f"global_load_ushort v{pCR}, v{oPar}, {sr(P_CRE, 2)}")
        g(f"global_load_ushort v{pCI}, v{oPar}, {sr(P_CIM, 2)}")
        g(f"s_lshl_b32 s{S_T1}, s{S_D0}, 1")
        g(f"s_load_dword s{S_LDT}, {sr(P_LDT, 2)}, s{S_T1}")
        g(f"s_load_dword s{S_DSK}, {sr(P_DSK, 2)}, s{S_T1}")
        self.vDummy = V.alloc(4, 4)
        g(f"s_lshl_b32 s{S_T0}, s{S_J}, 12")
        g(f"s_min_u32 s{S_T0}, s{S_T0}, L_codeend-{KNAME}-4096")
        g(f"v_lshl_add_u32 v{t0}, v0, 4, s{S_T0}")
        g(f"global_load_dwordx4 {vr(self.vDummy, 4)}, v{t0}, {sr(S_PC, 2)}", tag="pf")
        for r in (oPar, oUt, oUt1, oWm, oC):
            V.release(r)
        self.stamp("issued")

        g("s_cmp_lg_u32 s2, 0")
        with g.cond("s_cbranch_scc1"):
            g.wait_tag("zero")
            g(f"v_mov_b32 v{t0}, 0")
            g(f"v_mov_b32 v{t1}, 1")
            g(f"buffer_store_dword v{t1}, v{t0}, {sr(R_DBG, 4)}, 0 offen sc1")

        NG = 19
        kidx = V.alloc(NG)
        fm = V.alloc(2)
        g(f"s_mul_i32 s{S_T0}, s{S_CH}, {KC_CH}")
        g(f"s_add_u32 s{S_T0}, s{S_T0}, {KC + 16}")
        g(f"s_sub_u32 s{S_T1}, s{S_T0}, {4 * (0x4300 - 128)}")
        g(f"s_add_u32 s{S_T2}, s{S_T0}, {4 * 128}")
        g(f"v_and_b32 v{t0}, 127, v{vT}")
        g(f"v_lshlrev_b32 v{t0}, 4, v{t0}")
        g(f"v_sub_u32 v{t0}, 2047, v{t0}")
        g(f"v_cvt_f32_i32 v{fm}, v{t0}")
        g(f"v_lshl_add_u32 v{t0}, v{t0}, 2, s{S_T0}")
        g(f"v_add_f32 v{fm + 1}, -1.0, v{fm}")
        for p in range((NG + 1) // 2):
            g(f"v_cvt_pk_bf16_f32 v{t1}, |v{fm}|, |v{fm + 1}|")
            if 2 * p + 2 < NG:
                g(f"v_pk_add_f32 {vr(fm, 2)}, {vr(fm, 2)}, -2.0 op_sel_hi:[1,0]")
            for hl in range(2):
                e = 2 * p + hl
                if e >= NG:
                    continue
                g(f"v_mad_u32_u16 v{t2 + hl}, v{t1}, 4, s{S_T1} op_sel:[{hl},0,0,0]")
                g(f"v_subrev_u32 v{kidx + e}, {4 * e}, v{t0}")
            for hl in range(2):
                e = 2 * p + hl
                if e >= NG:
                    continue
                g(f"v_med3_i32 v{kidx + e}, v{t2 + hl}, v{kidx + e}, s{S_T2}")
        V.release(fm, 2)
        z = V.alloc(4, 4)
        for i in range(4):
            g(f"v_mov_b32 v{z + i}, 0")
        g(f"v_lshlrev_b32 v{t0}, 4, v{vT}")
        g(f"ds_write_b128 v{t0}, {vr(z, 4)} offset:{KC}")
        g(f"ds_write_b128 v{t0}, {vr(z, 4)} offset:{KC + 4096}")
        g(f"v_and_b32 v{t0}, 31, v{vL}")
        g(f"v_lshlrev_b32 v{t0}, 4, v{t0}")
        g(f"s_mul_i32 s{S_T0}, s{S_CH}, {HB_CH}")
        g(f"s_add_u32 s{S_T0}, s{S_T0}, {HB}")
        g(f"v_add_u32 v{t0}, s{S_T0}, v{t0}")
        g(f"ds_write_b128 v{t0}, {vr(z, 4)}")
        g(f"v_and_b32 v{t0}, 3, v{vL}")
        g(f"v_mul_u32_u24 v{t0}, {KT_COPY}, v{t0}")
        g(f"s_mul_i32 s{S_T0}, s{S_CH}, {KT_CH}")
        g(f"s_add_u32 s{S_T0}, s{S_T0}, {KT + 4096}")
        g(f"v_add_u32 v{t0}, s{S_T0}, v{t0}")
        g(f"ds_write_b128 v{t0}, {vr(z, 4)}")
        g(f"ds_write_b128 v{t0}, {vr(z, 4)} offset:16")
        V.release(z, 4)
        self.stamp("idx")

        g(f"s_cmp_ge_u32 s{S_J}, 24")
        with g.cond("s_cbranch_scc1"):
            self.mod_compute(wm, cv, T)
        V.release(wm, 16); V.release(cv, 2)
        self.stamp("mod")

        vFlag = V.alloc(1)
        g(f"v_mov_b32 v{t0}, 0")
        g(f"buffer_load_dword v{vFlag}, v{t0}, {sr(R_DBG, 4)}, 0 offen sc1")
        s1, s2 = V.alloc(2), V.alloc(2)
        ones = V.alloc(1)
        g(f"v_mov_b32 v{ones}, 0x3f803f80")
        for i in range(2):
            g(f"v_dot2_f32_bf16 v{s1 + i}, v{row + 4 * i}, v{ones}, 0")
            g(f"v_dot2_f32_bf16 v{s2 + i}, v{row + 4 * i}, v{row + 4 * i}, 0")
        for k in range(1, 4):
            for i in range(2):
                g(f"v_dot2c_f32_bf16 v{s1 + i}, v{row + 4 * i + k}, v{ones}")
                g(f"v_dot2c_f32_bf16 v{s2 + i}, v{row + 4 * i + k}, v{row + 4 * i + k}")
        g(f"v_permlane32_swap_b32 v{s1}, v{s1 + 1}")
        g(f"v_permlane32_swap_b32 v{s2}, v{s2 + 1}")
        g(f"v_add_f32 v{s1}, v{s1}, v{s1 + 1}")
        g(f"v_add_f32 v{s2}, v{s2}, v{s2 + 1}")
        for st_ in ("row_shr:1 row_mask:0xf", "row_shr:2 row_mask:0xf", "row_shr:4 row_mask:0xf", "row_shr:8 row_mask:0xf",
                    "row_bcast:15 row_mask:0xa"):
            for r in (s1, s2):
                g(f"v_add_f32_dpp v{r}, v{r}, v{r} {st_} bank_mask:0xf")
        st = V.alloc(4, 4)
        self.ln_finish(s1, s2, st + 1, st + 3, t0, t1)
        g(f"v_mov_b32 v{st}, v{st + 1}")
        g(f"v_mov_b32 v{st + 2}, v{st + 3}")
        g(f"s_lshl_b32 s{S_T0}, s2, 2")
        g(f"s_add_u32 s{S_T0}, s{S_T0}, s{S_WV}")
        g(f"s_lshl_b32 s{S_T0}, s{S_T0}, 4")
        g(f"s_add_u32 s{S_T0}, s{S_T0}, {STATS}")
        g(f"v_mov_b32 v{t0}, s{S_T0}")
        g(f"v_permlane32_swap_b32 v{st}, v{st + 1}")
        g(f"v_permlane32_swap_b32 v{st + 2}, v{st + 3}")
        g(f"s_mov_b64 {sr(S_EX, 2)}, exec")
        g(f"s_mov_b32 exec_lo, 0")
        g(f"s_mov_b32 exec_hi, 0x80000000")
        g(f"buffer_store_dwordx4 {vr(st, 4)}, v{t0}, {sr(R_WS, 4)}, 0 offen sc1")
        g(f"s_mov_b64 exec, {sr(S_EX, 2)}")
        V.release(s1, 2); V.release(s2, 2); V.release(row, 8); V.release(ones); V.release(oRow)
        self.stamp("ln1")

        ut = V.alloc(8, 4)
        g(f"v_and_b32 v{t0}, 3, v{vL}")
        g(f"v_lshrrev_b32 v{t1}, 4, v{vL}")
        g(f"v_lshlrev_b32 v{t2}, 1, v{t0}")
        g(f"v_xor_b32 v{t1}, v{t1}, v{t2}")
        g(f"v_lshlrev_b32 v{t1}, 4, v{t1}")
        g(f"v_lshl_add_u32 v{t1}, v{t0}, 9, v{t1}")
        g(f"v_bfe_u32 v{t2}, v{vL}, 2, 2")
        g(f"v_lshl_add_u32 v{t1}, v{t2}, 2, v{t1}")
        g(f"s_lshl_b32 s{S_T0}, s{S_WV}, 11")
        g(f"s_add_u32 s{S_T0}, s{S_T0}, {UTS}")
        g(f"v_add_u32 v{t1}, s{S_T0}, v{t1}")
        g(f"v_xor_b32 v{t2}, 64, v{t1}")
        g.wait_tag("ut")
        for hf in range(2):
            for e in range(4):
                g(f"ds_read_b32 v{ut + 4 * hf + e}, v{t1 + hf} offset:{128 * e}")
        g(f"v_lshrrev_b32 v{t3}, 2, v{vL}")
        g(f"v_lshlrev_b32 v{t3}, 13, v{t3}")
        g(f"v_lshl_add_u32 v{t3}, v{t0}, 4, v{t3}")
        g(f"s_lshl_b32 s{S_T0}, s{S_X}, 18")
        g(f"s_lshl_b32 s{S_T1}, s{S_J}, 8")
        g(f"s_add_u32 s{S_T0}, s{S_T0}, s{S_T1}")
        g(f"s_lshl_b32 s{S_T1}, s{S_WV}, 6")
        g(f"s_add_u32 s{S_T0}, s{S_T0}, s{S_T1}")
        g(f"s_add_u32 s{S_T0}, s{S_T0}, {UP}")
        g(f"s_add_u32 s{S_T1}, s{S_T0}, {16 * 8192}")
        g(f"buffer_store_dwordx4 {vr(ut, 4)}, v{t3}, {sr(R_WS, 4)}, s{S_T0} offen sc1")
        g(f"buffer_store_dwordx4 {vr(ut + 4, 4)}, v{t3}, {sr(R_WS, 4)}, s{S_T1} offen sc1")
        self.stamp("up")

        g.barrier()
        g(f"s_cmp_ge_u32 s{S_J}, 24")
        with g.cond("s_cbranch_scc1"):
            g(f"s_cmp_lg_u32 s{S_WV}, 0")
            with g.cond("s_cbranch_scc1"):
                self.mod_publish(T)
        V.release(ut, 8)

        P = V.alloc(4, 4)
        vdt = V.alloc(1)
        g("s_waitcnt lgkmcnt(0)")
        g(f"s_lshl_b32 s{S_T0}, s{S_CH}, 4")
        g(f"s_lshr_b32 s{S_T0}, s{S_LDT}, s{S_T0}")
        g(f"s_lshl_b32 s{S_T0}, s{S_T0}, 16")
        g(f"v_mov_b32 v{vdt}, s{S_T0}")
        g(f"v_mul_f32 v{vdt}, {fl(LOG2E)}, v{vdt}")
        g(f"v_lshlrev_b32 v{pLA}, 16, v{pLA}")
        g(f"v_exp_f32 v{vdt}, v{vdt}")
        g(f"v_mul_f32 v{pLA}, {fl(LOG2E)}, v{pLA}")
        g(f"v_lshlrev_b32 v{pCR}, 16, v{pCR}")
        g(f"v_exp_f32 v{pLA}, v{pLA}")
        g(f"v_lshlrev_b32 v{pCI}, 16, v{pCI}")
        g(f"v_max_f32 v{t0}, |v{pCR}|, |v{pCI}|")
        self.bf16_round(vdt, vdt)
        g(f"v_lshlrev_b32 v{pAI}, 16, v{pAI}")
        self.bf16_round(pLA, pLA)
        self.wave_reduce("max", [t0])
        g(f"v_mul_f32 v{P}, v{pLA}, v{vdt}")
        g(f"v_mul_f32 v{P + 1}, v{pAI}, v{vdt}")
        g(f"v_readlane_b32 s{S_T0}, v{t0}, 63")
        g(f"v_mul_f32 v{P}, {fl(-LOG2E)}, v{P}")
        g(f"v_mul_f32 v{P + 1}, {fl(1.0 / (2 * math.pi))}, v{P + 1}")
        g(f"s_and_b32 s{S_CSC}, s{S_T0}, 0x7f800000")
        g(f"s_sub_u32 s{S_T0}, 0x7f000000, s{S_CSC}")
        g(f"v_mul_f32 v{P + 2}, s{S_T0}, v{pCR}")
        g(f"v_mul_f32 v{P + 3}, s{S_T0}, v{pCI}")
        g(f"s_lshl_b32 s{S_T0}, s{S_WV}, 10")
        g(f"s_add_u32 s{S_T0}, s{S_T0}, {PARAM}")
        g(f"v_lshl_add_u32 v{t0}, v{vL}, 4, s{S_T0}")
        g(f"ds_write_b128 v{t0}, {vr(P, 4)}")
        k48 = V.alloc(1)
        g(f"v_mul_f32 v{t0}, {fl(2048.0)}, v{P}")
        g(f"v_mul_f32 v{t1}, {fl(2048.0)}, v{P + 1}")
        g(f"v_exp_f32 v{t0}, v{t0}")
        g(f"v_fract_f32 v{t1}, v{t1}")
        g(f"v_cos_f32 v{t2}, v{t1}")
        g(f"v_sin_f32 v{t3}, v{t1}")
        g(f"v_mul_f32 v{t2}, v{t2}, v{P + 2}")
        g(f"v_fma_f32 v{t2}, -v{t3}, v{P + 3}, v{t2}")
        g(f"v_mul_f32 v{k48}, v{t0}, v{t2}")
        self.wave_reduce("add", [k48])
        V.release(P, 4)
        for r in (pLA, pAI, pCR, pCI):
            V.release(r)
        self.stamp("ssm par")

        kg = self.kgen_setup()
        g(f"s_mov_b32 s{S_KK}, 0")
        g.label("L_kgen")
        self.kgen_step(kg)
        g(f"s_cmp_lg_u32 s{S_KK}, 0")
        with g.cond("s_cbranch_scc1"):
            self.arrive_first(vFlag, T)
            self.stamp("arrived")
            self.late_loads(T)
            self.stamp("late ld")
        g(f"s_add_u32 s{S_KK}, s{S_KK}, 1")
        g(f"s_cmp_lt_u32 s{S_KK}, 4")
        g("s_cbranch_scc1 L_kgen")
        V.release(vFlag)
        V.release(self.vDummy, 4)
        self.stamp("kgen")
        self.kgen_scatter(kg, k48, vdt, T)
        V.release(k48); V.release(vdt)
        self.p1 = dict(kidx=kidx, NG=NG, T=T)

    def arrive_first(self, vFlag, T):
        g = self.g
        t0, t1, t2, t3 = T
        self.stamp("kg step0")
        g("s_waitcnt vmcnt(0)")
        g("s_barrier")
        self.stamp("drained")
        g(f"s_cmp_lg_u32 s{S_WV}, 0")
        with g.cond("s_cbranch_scc1"):
            lab, done = g.newlabel("Lrdy"), g.newlabel("Lrdyd")
            g(f"v_mov_b32 v{t0}, 0")
            g(f"s_mov_b32 s{S_SPIN}, 0")
            g(f"v_cmp_ne_u32 vcc, 1, v{vFlag}")
            g(f"s_cbranch_vccz {done}")
            g.label(lab)
            g(f"buffer_load_dword v{t1}, v{t0}, {sr(R_DBG, 4)}, 0 offen sc1")
            g(f"s_add_u32 s{S_SPIN}, s{S_SPIN}, 1")
            g(f"s_waitcnt vmcnt(0)")
            g(f"v_cmp_ne_u32 vcc, 1, v{t1}")
            g(f"s_cmp_gt_u32 s{S_SPIN}, 0x40000")
            g(f"s_cbranch_scc1 {done}")
            g(f"s_cbranch_vccnz {lab}")
            g.label(done)
            g(f"s_and_b32 s{S_T0}, s2, 15")
            g(f"s_lshl_b32 s{S_T0}, s{S_T0}, 8")
            g(f"s_add_u32 s{S_T0}, s{S_T0}, {CNT_B1}")
            g(f"v_mov_b32 v{t0}, s{S_T0}")
            g(f"v_mov_b32 v{t1}, 1")
            g(f"s_mov_b64 {sr(S_EX, 2)}, exec")
            g(f"s_mov_b64 exec, 1")
            g(f"buffer_atomic_add v{t1}, v{t0}, {sr(R_WS, 4)}, 0 offen sc1")
            g(f"s_mov_b64 exec, {sr(S_EX, 2)}")

    def late_loads(self, T):
        g, V = self.g, self.V
        vL = self.vLane
        t0, t1, t2, t3 = T
        g("s_cmp_ge_u32 s2, 172")
        with g.cond("s_cbranch_scc1"):
            g(f"s_lshr_b32 s{S_T0}, s2, 1")
            g(f"s_lshl_b32 s{S_T0}, s{S_T0}, 14")
            g(f"s_and_b32 s{S_T1}, s2, 1")
            g(f"s_lshl_b32 s{S_T1}, s{S_T1}, 9")
            g(f"s_add_u32 s{S_T0}, s{S_T0}, s{S_T1}")
            g(f"s_lshl_b32 s{S_T1}, s{S_WV}, 7")
            g(f"s_add_u32 s{S_T0}, s{S_T0}, s{S_T1}")
            g(f"v_lshrrev_b32 v{t0}, 3, v{vL}")
            g(f"v_and_b32 v{t1}, 7, v{vL}")
            g(f"v_lshlrev_b32 v{t1}, 4, v{t1}")
            g(f"v_lshl_add_u32 v{t0}, v{t0}, 10, v{t1}")
            g(f"s_lshl_b32 s{S_T1}, s{S_WV}, 11")
            g(f"s_add_u32 m0, s{S_T1}, {WDS}")
            g(f"s_add_u32 s{S_T2}, s{S_T0}, {8192 - 1024}")
            g(f"buffer_load_dwordx4 v{t0}, {sr(R_WD, 4)}, s{S_T0} offen lds", tag="wd")
            g(f"buffer_load_dwordx4 v{t0}, {sr(R_WD, 4)}, s{S_T2} offen offset:1024 lds", tag="wd")
        wpre = self.wpre
        g(f"s_lshr_b32 s{S_T0}, s{S_J}, 3")
        g(f"s_lshl_b32 s{S_T0}, s{S_T0}, 3")
        g(f"s_add_u32 s{S_T0}, s{S_T0}, s{S_X}")
        g(f"s_lshl_b32 s{S_T0}, s{S_T0}, 2")
        g(f"s_and_b32 s{S_T1}, s{S_J}, 3")
        g(f"s_add_u32 s{S_MT}, s{S_T0}, s{S_T1}")
        g(f"s_bfe_u32 s{S_DH}, s{S_J}, 0x10002")
        g(f"s_cmp_lt_u32 s{S_MT}, 86")
        g(f"s_cselect_b32 s{S_WACT}, 1, 0")
        g(f"s_min_u32 s{S_MT}, s{S_MT}, 85")
        ad = V.alloc(2)
        g(f"s_lshl_b32 s{S_T0}, s{S_DH}, 8")
        g(f"s_lshl_b32 s{S_T1}, s{S_WV}, 4")
        g(f"s_add_u32 s{S_T0}, s{S_T0}, s{S_T1}")
        g(f"v_lshrrev_b32 v{t0}, 2, v{vL}")
        g(f"v_add_u32 v{t0}, s{S_T0}, v{t0}")
        g(f"v_mul_u32_u24 v{t0}, 2752, v{t0}")
        g(f"v_and_b32 v{t1}, 1, v{vL}")
        g(f"v_lshl_add_u32 v{t0}, v{t1}, 4, v{t0}")
        g(f"s_lshl_b32 s{S_T0}, s{S_MT}, 5")
        g(f"v_add_u32 v{t0}, s{S_T0}, v{t0}")
        g(f"v_and_b32 v{t1}, 2, v{vL}")
        g(f"v_cmp_eq_u32 vcc, 2, v{t1}")
        g(f"v_mov_b32 v{t2}, s{P_WG}")
        g(f"v_mov_b32 v{t3}, s{P_WU}")
        g(f"v_cndmask_b32 v{ad}, v{t2}, v{t3}, vcc")
        g(f"v_mov_b32 v{t2}, s{P_WG + 1}")
        g(f"v_mov_b32 v{t3}, s{P_WU + 1}")
        g(f"v_cndmask_b32 v{ad + 1}, v{t2}, v{t3}, vcc")
        g(f"v_add_co_u32 v{ad}, vcc, v{ad}, v{t0}")
        g(f"v_addc_co_u32 v{ad + 1}, vcc, 0, v{ad + 1}, vcc")
        for i in range(4):
            g(f"global_load_dwordx4 {vr(wpre + 4 * i, 4)}, {vr(ad, 2)}, off")
            if i < 3:
                g(f"v_add_co_u32 v{ad}, vcc, {64 * 2752}, v{ad}")
                g(f"v_addc_co_u32 v{ad + 1}, vcc, 0, v{ad + 1}, vcc")
        V.release(ad, 2)

    def ln_finish(self, s1, s2, rs, nm, t0, t1):
        g = self.g
        g(f"v_mul_f32 v{s1}, {fl(1.0 / 512)}, v{s1}")
        g(f"v_mul_f32 v{s2}, {fl(1.0 / 512)}, v{s2}")
        g(f"v_fma_f32 v{s2}, -v{s1}, v{s1}, v{s2}")
        g(f"v_max_f32 v{s2}, 0, v{s2}")
        self.bf16_round(t0, s1)
        self.bf16_round(s2, s2)
        g(f"v_add_f32 v{s2}, {fl(1e-5)}, v{s2}")
        self.bf16_round(s2, s2)
        g(f"v_sqrt_f32 v{s2}, v{s2}")
        self.bf16_round(s2, s2)
        g(f"v_rcp_f32 v{rs}, v{s2}")
        g(f"v_mul_f32 v{nm}, -v{t0}, v{rs}")

    def mod_compute(self, wm, cv, T):
        g, V = self.g, self.V
        t0, t1, t2, t3 = T
        x = V.alloc(4, 2)
        e = V.alloc(4, 2)
        for i in range(2):
            g(f"v_lshlrev_b32 v{x + 2 * i}, 16, v{cv + i}")
            g(f"v_and_b32 v{x + 2 * i + 1}, 0xffff0000, v{cv + i}")
        for i in range(4):
            g(f"v_mul_f32 v{e + i}, {fl(-LOG2E)}, v{x + i}")
        for i in range(4):
            g(f"v_exp_f32 v{e + i}, v{e + i}")
        for i in range(4):
            g(f"v_add_f32 v{e + i}, 1.0, v{e + i}")
        for i in range(4):
            g(f"v_rcp_f32 v{e + i}, v{e + i}")
        for i in range(4):
            g(f"v_mul_f32 v{x + i}, v{x + i}, v{e + i}")
        g(f"v_cvt_pk_bf16_f32 v{e}, v{x}, v{x + 1}")
        g(f"v_cvt_pk_bf16_f32 v{e + 1}, v{x + 2}, v{x + 3}")
        acc = V.alloc(8, 2)
        g(f"s_mov_b32 s{S_T0}, 0x05040100")
        g(f"s_mov_b32 s{S_T1}, 0x07060302")
        for p in range(2):
            ra, rb = wm + 8 * p, wm + 8 * p + 4
            for k in range(4):
                g(f"v_perm_b32 v{x}, v{rb + k}, v{ra + k}, s{S_T0}")
                g(f"v_perm_b32 v{x + 1}, v{rb + k}, v{ra + k}, s{S_T1}")
                if p == 0:
                    g(f"v_dot2_f32_bf16 v{acc + 2 * k}, v{x}, v{e + p}, 0")
                    g(f"v_dot2_f32_bf16 v{acc + 2 * k + 1}, v{x + 1}, v{e + p}, 0")
                else:
                    g(f"v_dot2c_f32_bf16 v{acc + 2 * k}, v{x}, v{e + p}")
                    g(f"v_dot2c_f32_bf16 v{acc + 2 * k + 1}, v{x + 1}, v{e + p}")
        for k in range(4):
            g(f"v_permlane32_swap_b32 v{acc + 2 * k}, v{acc + 2 * k + 1}")
        for k in range(4):
            g(f"v_add_f32 v{e + k}, v{acc + 2 * k}, v{acc + 2 * k + 1}")
        for m in range(2):
            g(f"v_permlane16_swap_b32 v{e + 2 * m}, v{e + 2 * m + 1}")
        for m in range(2):
            g(f"v_add_f32 v{x + m}, v{e + 2 * m}, v{e + 2 * m + 1}")
        for st in (2, 4, 8):
            for m in range(2):
                g(f"v_add_f32_dpp v{x + m}, v{x + m}, v{x + m} row_shr:{st} row_mask:0xf bank_mask:0xf")
        g(f"v_lshrrev_b32 v{t0}, 4, v{self.vLane}")
        g(f"v_and_b32 v{t1}, 1, v{self.vLane}")
        g(f"v_lshl_add_u32 v{t0}, v{t0}, 1, v{t1}")
        g(f"s_lshl_b32 s{S_T0}, s{S_WV}, 6")
        g(f"s_add_u32 s{S_T0}, s{S_T0}, {MISC}")
        g(f"v_lshl_add_u32 v{t0}, v{t0}, 3, s{S_T0}")
        g(f"s_mov_b64 {sr(S_EX, 2)}, exec")
        g(f"s_mov_b32 exec_lo, 0xc000c000")
        g(f"s_mov_b32 exec_hi, 0xc000c000")
        g(f"ds_write_b64 v{t0}, {vr(x, 2)}")
        g(f"s_mov_b64 exec, {sr(S_EX, 2)}")
        V.release(x, 4); V.release(e, 4); V.release(acc, 8)

    def mod_publish(self, T):
        g, V = self.g, self.V
        t0, t1, t2, t3 = T
        vL = self.vLane
        x = V.alloc(4, 2)
        g(f"v_bfe_u32 v{t0}, v{vL}, 1, 1")
        g(f"v_and_b32 v{t1}, 1, v{vL}")
        g(f"v_lshl_add_u32 v{t0}, v{t1}, 1, v{t0}")
        g(f"v_bfe_u32 v{t1}, v{vL}, 3, 1")
        g(f"v_lshl_add_u32 v{t0}, v{t0}, 1, v{t1}")
        g(f"v_bfe_u32 v{t1}, v{vL}, 2, 1")
        g(f"v_lshl_add_u32 v{t0}, v{t0}, 1, v{t1}")
        g(f"v_lshlrev_b32 v{t0}, 2, v{t0}")
        g(f"v_add_u32 v{t0}, {MISC}, v{t0}")
        for w in range(4):
            g(f"ds_read_b32 v{x + w}, v{t0} offset:{64 * w}")
        g(f"s_mul_i32 s{S_T0}, s{S_X}, 24")
        g(f"s_add_u32 s{S_T0}, s{S_T0}, s{S_J}")
        g(f"s_lshl_b32 s{S_T0}, s{S_T0}, 6")
        g(f"s_add_u32 s{S_T0}, s{S_T0}, {MOD}")
        g(f"v_lshl_add_u32 v{t0}, v{vL}, 2, s{S_T0}")
        g(f"v_add_f32 v{x}, v{x}, v{x + 1}")
        g(f"v_add_f32 v{x + 2}, v{x + 2}, v{x + 3}")
        g(f"v_add_f32 v{x}, v{x}, v{x + 2}")
        self.bf16_round(x, x)
        g(f"s_mov_b64 {sr(S_EX, 2)}, exec")
        g(f"s_mov_b64 exec, 0xffff")
        g(f"buffer_store_dword v{x}, v{t0}, {sr(R_WS, 4)}, 0 offen sc1")
        g(f"s_mov_b64 exec, {sr(S_EX, 2)}")
        V.release(x, 4)

    def tr_lane_parts(self, tq, tr_, tc):
        g, vL = self.g, self.vLane
        g(f"v_lshrrev_b32 v{tq}, 4, v{vL}")
        g(f"v_bfe_u32 v{tr_}, v{vL}, 2, 2")
        g(f"v_and_b32 v{tc}, 3, v{vL}")

    def wd_relayout(self, T):
        g, V = self.g, self.V
        t0, t1, t2, t3 = T
        fr = V.alloc(8, 4)
        self.tr_lane_parts(t0, t1, t2)
        g(f"v_lshrrev_b32 v{t3}, 1, v{t0}")
        g(f"v_lshl_add_u32 v{t1}, v{t3}, 2, v{t1}")
        g(f"v_lshlrev_b32 v{t1}, 7, v{t1}")
        g(f"v_and_b32 v{t0}, 1, v{t0}")
        g(f"v_lshl_add_u32 v{t1}, v{t0}, 5, v{t1}")
        g(f"v_lshl_add_u32 v{t1}, v{t2}, 3, v{t1}")
        g(f"s_lshl_b32 s{S_T0}, s{S_WV}, 11")
        g(f"s_add_u32 s{S_T0}, s{S_T0}, {WDS}")
        g(f"v_add_u32 v{t1}, s{S_T0}, v{t1}")
        g.wait_tag("wd")
        for mt in range(2):
            for j in range(2):
                g(f"ds_read_b64_tr_b16 {vr(fr + 4 * mt + 2 * j, 2)}, v{t1} offset:{j * 1024 + mt * 64}")
        g(f"s_and_b32 s{S_T0}, s2, 1")
        g(f"s_lshl_b32 s{S_T0}, s{S_T0}, 2")
        g(f"s_add_u32 s{S_T0}, s{S_T0}, s{S_WV}")
        g(f"s_mul_i32 s{S_T0}, s{S_T0}, {WDF_DB}")
        g(f"s_lshr_b32 s{S_T1}, s2, 1")
        g(f"s_lshl_b32 s{S_T1}, s{S_T1}, 11")
        g(f"s_add_u32 s{S_T0}, s{S_T0}, s{S_T1}")
        g(f"s_add_u32 s{S_T0}, s{S_T0}, {WDF}")
        g(f"v_lshlrev_b32 v{t0}, 4, v{self.vLane}")
        for mt in range(2):
            g(f"buffer_store_dwordx4 {vr(fr + 4 * mt, 4)}, v{t0}, {sr(R_WS, 4)}, s{S_T0} offen offset:{mt * 1024} sc1")
        g("s_nop 1")
        V.release(fr, 8)

    def kgen_setup(self):
        g, V = self.g, self.V
        kg = {}
        kg["acc"] = V.alloc(16, 4)
        kg["A"] = V.alloc(16, 4)
        kg["B"] = V.alloc(16, 4)
        kg["P"] = V.alloc(16, 4)
        kg["Y"] = V.alloc(8, 2)
        kg["T"] = V.alloc(8, 2)
        kg["bb"] = V.alloc(2, 2)
        kg["pa"] = V.alloc(1)
        self.wpre = V.alloc(16, 4)
        t = kg["T"]
        g(f"v_and_b32 v{t}, 15, v{self.vLane}")
        g(f"v_cvt_f32_u32 v{kg['bb']}, v{t}")
        g(f"v_cvt_f32_u32 v{kg['bb'] + 1}, v{t}")
        g(f"v_lshrrev_b32 v{t}, 4, v{self.vLane}")
        g(f"v_lshlrev_b32 v{t}, 6, v{t}")
        g(f"s_lshl_b32 s{S_T0}, s{S_WV}, 10")
        g(f"s_add_u32 s{S_T0}, s{S_T0}, {PARAM}")
        g(f"v_add_u32 v{kg['pa']}, s{S_T0}, v{t}")
        for i in range(16):
            g(f"v_mov_b32 v{kg['acc'] + i}, 0")
        g("s_waitcnt lgkmcnt(0)")
        return kg

    def kgen_step(self, kg):
        g = self.g
        A, B, P, Y, T, bb, acc = kg["A"], kg["B"], kg["P"], kg["Y"], kg["T"], kg["bb"], kg["acc"]
        E = range(4)
        y = lambda e: Y + 2 * e
        t = lambda e: T + 2 * e
        p = lambda e: P + 4 * e
        for e in E:
            g(f"ds_read_b128 {vr(p(e), 4)}, v{kg['pa']} offset:{e * 16}")
        g(f"v_add_u32 v{kg['pa']}, 256, v{kg['pa']}")
        for e in E:
            g(f"v_pk_mul_f32 {vr(t(e), 2)}, {vr(p(e), 2)}, {vr(bb, 2)}")
        for e in E:
            g(f"v_exp_f32 v{t(e)}, v{t(e)}")
            g(f"v_fract_f32 v{t(e) + 1}, v{t(e) + 1}")
        for e in E:
            g(f"v_cos_f32 v{y(e)}, v{t(e) + 1}")
            g(f"v_sin_f32 v{y(e) + 1}, v{t(e) + 1}")
        for e in E:
            g(f"v_pk_mul_f32 {vr(y(e), 2)}, {vr(y(e), 2)}, {vr(t(e), 2)} op_sel_hi:[1,0]")

        def square():
            for e in E:
                g(f"v_pk_mul_f32 {vr(t(e), 2)}, {vr(y(e), 2)}, {vr(y(e), 2)} op_sel:[1,1] op_sel_hi:[0,1]")
            for e in E:
                g(f"v_pk_fma_f32 {vr(y(e), 2)}, {vr(y(e), 2)}, {vr(y(e), 2)}, {vr(t(e), 2)} "
                  f"op_sel_hi:[0,1,1] neg_lo:[0,0,1]")

        for s in range(4):
            if s:
                square()
            for e in E:
                g(f"v_cvt_pk_f16_f32 v{A + 4 * s + e}, v{y(e)}, v{y(e) + 1}")
        for s in range(4):
            square()
            for e in E:
                g(f"v_pk_mul_f32 {vr(t(e), 2)}, {vr(p(e) + 2, 2)}, {vr(y(e), 2)} op_sel:[1,1] op_sel_hi:[1,0]")
            for e in E:
                g(f"v_pk_fma_f32 {vr(t(e), 2)}, {vr(p(e) + 2, 2)}, {vr(y(e), 2)}, {vr(t(e), 2)} "
                  f"op_sel_hi:[0,1,1] neg_lo:[0,0,1] neg_hi:[1,0,1]")
            for e in E:
                g(f"v_cvt_pk_f16_f32 v{B + 4 * s + e}, v{t(e)}, v{t(e) + 1}")
            g(f"v_mfma_f32_16x16x32_f16 {vr(acc + 4 * s, 4)}, {vr(A + 4 * s, 4)}, {vr(B + 4 * s, 4)}, {vr(acc + 4 * s, 4)}")

    def kgen_scatter(self, kg, k48, vdt, T):
        g, V = self.g, self.V
        t0, t1, t2, t3 = T
        vL = self.vLane
        acc = kg["acc"]
        for k in ("A", "B", "P"):
            V.release(kg[k], 16)
        V.release(kg["Y"], 8); V.release(kg["T"], 8); V.release(kg["bb"], 2); V.release(kg["pa"])
        g(f"v_mul_f32 v{t0}, s{S_CSC}, v{vdt}")
        g(f"s_lshl_b32 s{S_T0}, s{S_WV}, 11")
        g(f"s_add_u32 s{S_T0}, s{S_T0}, {KX}")
        g(f"v_add_f32 v{t0}, v{t0}, v{t0}")
        g(f"v_lshl_add_u32 v{t1}, v{vL}, 4, s{S_T0}")
        g(f"v_mul_f32 v{k48}, v{k48}, v{t0}")
        for i in range(16):
            g(f"v_mul_f32 v{acc + i}, v{acc + i}, v{t0}")
        g(f"s_cmp_eq_u32 s{S_NH}, 0")
        with g.cond("s_cbranch_scc0"):
            g(f"ds_write_b128 v{t1}, {vr(acc + 8, 4)}")
            g(f"ds_write_b128 v{t1}, {vr(acc + 12, 4)} offset:1024")
        g(f"s_cmp_eq_u32 s{S_NH}, 1")
        with g.cond("s_cbranch_scc0"):
            g(f"ds_write_b128 v{t1}, {vr(acc, 4)}")
            g(f"ds_write_b128 v{t1}, {vr(acc + 4, 4)} offset:1024")
        g(f"s_lshl_b32 s{S_T0}, s{S_WV}, 2")
        g(f"s_add_u32 s{S_T0}, s{S_T0}, {MISC + 512}")
        g(f"v_mov_b32 v{t2}, s{S_T0}")
        g(f"s_mov_b64 {sr(S_EX, 2)}, exec")
        g(f"s_mov_b32 exec_lo, 0")
        g(f"s_mov_b32 exec_hi, 0x80000000")
        g(f"ds_write_b32 v{t2}, v{k48}")
        g(f"s_mov_b64 exec, {sr(S_EX, 2)}")
        g(f"s_xor_b32 s{S_T0}, s{S_WV}, 1")
        g(f"s_lshl_b32 s{S_T0}, s{S_T0}, 11")
        g(f"s_add_u32 s{S_T0}, s{S_T0}, {KX}")
        g(f"v_lshl_add_u32 v{t1}, v{vL}, 4, s{S_T0}")
        g(f"v_and_b32 v{t2}, 15, v{vL}")
        g(f"v_lshlrev_b32 v{t2}, 6, v{t2}")
        g(f"v_lshrrev_b32 v{t3}, 4, v{vL}")
        g(f"v_lshl_add_u32 v{t2}, v{t3}, 4, v{t2}")
        g(f"s_mul_i32 s{S_T0}, s{S_CH}, {KC_CH}")
        g(f"s_add_u32 s{S_T0}, s{S_T0}, {KC + 16}")
        g(f"s_lshl_b32 s{S_T1}, s{S_NH}, 10")
        g(f"s_add_u32 s{S_T1}, s{S_T1}, s{S_T0}")
        g(f"v_add_u32 v{t2}, s{S_T1}, v{t2}")
        g.barrier()
        F = V.alloc(8, 4)
        k2 = V.alloc(2, 2)
        g(f"ds_read_b128 {vr(F, 4)}, v{t1}")
        g(f"ds_read_b128 {vr(F + 4, 4)}, v{t1} offset:1024")
        g(f"s_lshl_b32 s{S_T1}, s{S_CH}, 3")
        g(f"s_add_u32 s{S_T1}, s{S_T1}, {MISC + 512}")
        g(f"v_mov_b32 v{t3}, s{S_T1}")
        g(f"ds_read_b64 {vr(k2, 2)}, v{t3}")
        g(f"s_cmp_eq_u32 s{S_NH}, 0")
        with g.cond("s_cbranch_scc0"):
            for i in range(0, 8, 2):
                g(f"v_pk_add_f32 {vr(F + i, 2)}, {vr(F + i, 2)}, {vr(acc + i, 2)}")
        g(f"s_cmp_eq_u32 s{S_NH}, 1")
        with g.cond("s_cbranch_scc0"):
            for i in range(0, 8, 2):
                g(f"v_pk_add_f32 {vr(F + i, 2)}, {vr(F + i, 2)}, {vr(acc + 8 + i, 2)}")
        g(f"s_mov_b32 s{S_M0}, 0xff00ff00")
        g(f"s_mov_b32 s{S_M0 + 1}, 0xff00ff00")
        g(f"s_cmp_eq_u32 s{S_NH}, 0")
        g(f"s_cselect_b64 exec, {sr(S_EX, 2)}, {sr(S_M0, 2)}")
        g(f"ds_write_b128 v{t2}, {vr(F, 4)}")
        g(f"s_mov_b64 exec, {sr(S_M0, 2)}")
        g(f"ds_write_b128 v{t2}, {vr(F + 4, 4)} offset:512")
        g(f"s_mov_b64 exec, {sr(S_EX, 2)}")
        g(f"v_add_f32 v{k2}, v{k2}, v{k2 + 1}")
        g(f"s_add_u32 s{S_T0}, s{S_T0}, {4 * 640}")
        g(f"v_mov_b32 v{t1}, s{S_T0}")
        g(f"ds_write_b32 v{t1}, v{k2}")
        V.release(F, 8); V.release(k2, 2)
        V.release(acc, 16)

    def kgen_expand(self):
        g, V = self.g, self.V
        kidx, NG = self.p1["kidx"], self.p1["NG"]
        t0, t1, t2, t3 = self.p1["T"]
        r = V.alloc(NG)
        for e in range(NG):
            g(f"ds_read_b32 v{r + e}, v{kidx + e}")
        g(f"v_and_b32 v{t0}, 127, v{self.vTid}")
        g(f"v_lshlrev_b32 v{t0}, 5, v{t0}")
        g(f"s_mul_i32 s{S_T0}, s{S_CH}, {KT_CH}")
        g(f"s_add_u32 s{S_T0}, s{S_T0}, {KT}")
        g(f"v_add_u32 v{t0}, s{S_T0}, v{t0}")
        o = V.alloc(16, 4)
        for s in range(4):
            ob = o + 8 * (s & 1)
            for k in range(8):
                g(f"v_cvt_pk_bf16_f32 v{ob + k}, v{r + 2 * k + s}, v{r + 2 * k + s + 1}")
            g(f"ds_write_b128 v{t0}, {vr(ob, 4)} offset:{s * KT_COPY}")
            g(f"ds_write_b128 v{t0}, {vr(ob + 4, 4)} offset:{s * KT_COPY + 16}")
        V.release(r, NG)
        V.release(o, 16)
        V.release(kidx, NG)

    def dump_lds(self, lds_off, nbytes, ws_off):
        if not self.dumps:
            return
        g, V = self.g, self.V
        a, b = V.alloc(1), V.alloc(1)
        d = V.alloc(4, 4)
        g.barrier()
        g(f"s_mul_i32 s96, s2, {nbytes}")
        g(f"s_add_u32 s96, s96, {hx(DBGWS + ws_off)}")
        n = (nbytes + 4095) // 4096
        for i in range(n):
            g(f"v_lshlrev_b32 v{a}, 4, v{self.vTid}")
            g(f"v_add_u32 v{a}, {i * 4096}, v{a}")
            g(f"v_cmp_gt_u32 vcc, {nbytes}, v{a}")
            g(f"s_and_saveexec_b64 s[98:99], vcc")
            g(f"v_add_u32 v{b}, {lds_off}, v{a}")
            g(f"ds_read_b128 {vr(d, 4)}, v{b}")
            g(f"v_add_u32 v{a}, s96, v{a}")
            g(f"s_waitcnt lgkmcnt(0)")
            g(f"buffer_store_dwordx4 {vr(d, 4)}, v{a}, {sr(R_WS, 4)}, 0 offen")
            g(f"s_waitcnt vmcnt(0)")
            g(f"s_mov_b64 exec, s[98:99]")
        V.release(a); V.release(b); V.release(d, 4)

    def build(self):
        g = self.g
        self.entry()
        self.phase1()
        self.stamp("scatter")
        self.poll(CNT_B1, 16, 16)
        self.stamp("B1 done")
        if self.stop_after >= 2:
            import p2
            p2.phase2(self)
        else:
            self.kgen_expand()
            g("s_cmp_ge_u32 s2, 172")
            with g.cond("s_cbranch_scc1"):
                self.wd_relayout(self.p1["T"])
            self.stamp("expand")
            self.dump_lds(KT, 2 * KT_CH, 0)
            self.dump_lds(KC, 2 * KC_CH, 0x900000)
        if self.stop_after >= 3:
            import p3
            p3.phase3(self)
        if self.stop_after >= 4:
            import p4
            p4.phase4(self)
        self.stamp("end")
        self.stamp_flush()
        g("s_waitcnt vmcnt(0) lgkmcnt(0)")
        g.label("L_end")
        g("s_endpgm")
        body = g.finish()
        return self.wrap(body)

    def wrap(self, body):
        hdr = open("adaLN_cond__ssm_conv_s4d__geglu_ffn__prompt.s.ref").read().split("\n")
        lines = []
        for ln in hdr:
            if ln.startswith("; @launch"):
                lines.append(f"; @launch grid=(256,1,1) block=(256,1,1) lds={LDS_BYTES}")
            elif ln.startswith(";"):
                lines.append(ln)
            else:
                break
        txt = "\n".join(lines) + "\n"
        txt += '.amdgcn_target "amdgcn-amd-amdhsa--gfx950"\n.text\n'
        txt += f".globl {KNAME}\n.p2align 8\n.type {KNAME},@function\n{KNAME}:\n"
        txt += body
        txt += ".p2align 8\n.fill 1024, 4, 0xbf800000\nL_codeend:\n"
        nv = max(self.V.hi, 8)
        acc_off = 256 if self.A.hi else (nv + 3) // 4 * 4
        total = acc_off + self.A.hi
        total = max(total, 264)
        acc_off = 256
        txt += f"""
.section .rodata,"a"
.p2align 6
.amdhsa_kernel {KNAME}
  .amdhsa_next_free_vgpr 512
  .amdhsa_next_free_sgpr 102
  .amdhsa_accum_offset 256
  .amdhsa_group_segment_fixed_size 0
  .amdhsa_kernarg_size 128
  .amdhsa_user_sgpr_count 2
  .amdhsa_user_sgpr_kernarg_segment_ptr 1
  .amdhsa_system_sgpr_workgroup_id_x 1
.end_amdhsa_kernel
"""
        return txt


if __name__ == "__main__":
    import argparse
    ap = argparse.ArgumentParser()
    ap.add_argument("-o", default="k.s")
    ap.add_argument("--stop", type=int, default=99)
    ap.add_argument("--dumps", action="store_true")
    ap.add_argument("--stamps", action="store_true")
    a = ap.parse_args()
    k = Kern(a.stop, a.dumps, a.stamps)
    txt = k.build()
    open(a.o, "w").write(txt)
    open(a.o.replace(".s", ".stamps"), "w").write("\n".join(k.stamp_names))
    print("wrote", a.o, len(txt), "bytes; vgpr hi", k.V.hi, "agpr hi", k.A.hi)
```
